```python
import torch

def _softmax(x, axis=-1):
    return torch.softmax(x, dim=axis)
def _gelu(x):
    return torch.nn.functional.gelu(x, approximate="tanh")
def _silu(x):
    return torch.nn.functional.silu(x)
def _sigmoid(x):
    return torch.sigmoid(x)
def _layernorm(x, axis=-1, eps=1e-5):
    m = x.mean(dim=axis, keepdim=True)
    v = x.var(dim=axis, keepdim=True, unbiased=False)
    return (x - m) / torch.sqrt(v + eps)
def _scatter_add(tgt, idx, src, axis=0):
    return tgt.clone().index_add_(axis, idx, src)
def _segment_sum(src, seg, n):
    out = torch.zeros((n,) + src.shape[1:], dtype=src.dtype)
    return out.index_add_(0, seg, src)
def _pad(x, pw):
    flat = tuple(v for pair in reversed(pw) for v in pair)
    return torch.nn.functional.pad(x, flat)

kernel_name = 'recurrent_scan__sliding_local_dilated__mixer_channel_mlp__prompt'

def setup_inputs():

    _w = (lambda a: (lambda t: t.to(torch.bfloat16) if t.is_floating_point() else t)(torch.as_tensor(a)))
    def _A_setup():
        B, S, D = 1, 2048, 448
        return {
            "x": _w((lambda *s: torch.randn(*s, dtype=torch.bfloat16) * 0.05)(B, S, D)),
            "wqkv": _w((lambda *s: torch.randn(*s, dtype=torch.bfloat16) * 0.05)(D, 3 * D)),
            "wo": _w((lambda *s: torch.randn(*s, dtype=torch.bfloat16) * 0.05)(D, D)),
        }
    _A_in = _A_setup()

    def _B_setup():
        B, S, D, F = 1, 2048, 448, 1792
        return {
            "x": _w((lambda *s: torch.randn(*s, dtype=torch.bfloat16) * 0.05)(B, S, D)),
            "w1": _w((lambda *s: torch.randn(*s, dtype=torch.bfloat16) * 0.8)(D, F) * (D ** -0.5)),
            "b1": _w((lambda *s: torch.randn(*s, dtype=torch.bfloat16) * 0.4)(F)),
            "w2": _w((lambda *s: torch.randn(*s, dtype=torch.bfloat16) * 0.05)(F, D) * (F ** -0.5)),
            "b2": _w((lambda *s: torch.randn(*s, dtype=torch.bfloat16) * 0.05)(D)),
        }
    _B_in = _B_setup()

    return {
        "A_x": _A_in["x"],
        "A_wqkv": _A_in["wqkv"],
        "A_wo": _A_in["wo"],
        "B_x": _B_in["x"],
        "B_w1": _B_in["w1"],
        "B_b1": _B_in["b1"],
        "B_w2": _B_in["w2"],
        "B_b2": _B_in["b2"],
    }

def reference(A_x, A_wqkv, A_wo, B_x, B_w1, B_b1, B_w2, B_b2):
    def _A_ref(x, wqkv, wo):
        B, S, D = x.shape
        H = 16; Dh = D // H
        W, dil = 8, 2
        qkv = (lambda x, *d: x.permute(*d))((x @ wqkv).reshape(B, S, 3, H, Dh), 2, 0, 3, 1, 4)
        q, k, v = qkv[0], qkv[1], qkv[2]
        scale = Dh ** -0.5
        pos = torch.arange(S)
        off = torch.arange(W) * dil
        idx = pos[:, None] - off[None, :]
        mask = idx >= 0
        idx_c = torch.where(mask, idx, 0).reshape(-1)
        kg = k[:, :, idx_c, :].reshape(B, H, S, W, Dh)
        vg = v[:, :, idx_c, :].reshape(B, H, S, W, Dh)
        logits = torch.einsum("bhsd,bhswd->bhsw", q, kg) * scale
        logits = torch.where(mask[None, None, :, :], logits, -1e9)
        attn = _softmax(logits, axis=-1)
        o = torch.einsum("bhsw,bhswd->bhsd", attn, vg)
        return (lambda x, *d: x.permute(*d))(o, 0, 2, 1, 3).reshape(B, S, D) @ wo

    def _B_ref(x, w1, b1, w2, b2):
        y = _layernorm(x, axis=-1)
        h = _gelu(torch.einsum("bsd,df->bsf", y, w1) + b1)
        return torch.einsum("bsf,fd->bsd", h, w2) + b2

    x = A_x
    xn = _layernorm(x, axis=-1)
    s = _A_ref(xn, A_wqkv, A_wo)
    g = _silu(_B_ref(xn, B_w1, B_b1, B_w2, B_b2))
    return x + s * g
```

```python
import re

TRANS = ("v_exp_f32", "v_log_f32", "v_rcp_f32", "v_rsq_f32", "v_sqrt_f32", "v_sin_f32", "v_cos_f32")

def regs_of(op):
    op = op.strip()
    op = op.lstrip("-")
    if op.startswith("abs(") or op.startswith("|"):
        op = op.strip("|").replace("abs(", "").rstrip(")")
    m = re.fullmatch(r"([vsa])(\d+)", op)
    if m: return {(m.group(1), int(m.group(2)))}
    m = re.fullmatch(r"([vsa])\[(\d+):(\d+)\]", op)
    if m: return {(m.group(1), i) for i in range(int(m.group(2)), int(m.group(3)) + 1)}
    if op == "vcc": return {("s", 106), ("s", 107)}
    if op == "vcc_lo": return {("s", 106)}
    if op == "vcc_hi": return {("s", 107)}
    if op == "m0": return {("s", 124)}
    if op == "exec": return {("s", 126), ("s", 127)}
    return set()

class Ins:
    def __init__(self, text):
        self.text = text
        t = text.split(";")[0].strip()
        self.label = None
        self.op = ""
        self.w = set(); self.r = set()
        self.kind = "none"
        self.states = 0
        if not t or t.startswith("."):
            return
        if t.endswith(":"):
            self.label = t[:-1]; return
        parts = t.split(None, 1)
        self.op = op = parts[0]
        rest = parts[1] if len(parts) > 1 else ""
        ops = []; cur = ""; depth = 0
        for ch in rest:
            if ch in "[(": depth += 1
            if ch in "])": depth -= 1
            if ch == "," and depth == 0: ops.append(cur.strip()); cur = ""
            else: cur += ch
        if cur.strip(): ops.append(cur.strip())
        mods = ""
        if ops:
            sp = ops[-1].split(None, 1)
            ops[-1] = sp[0]
            if len(sp) > 1: mods = sp[1]
        self.ops = ops; self.mods = mods
        self.states = 1
        R = [regs_of(o) for o in ops]
        if op == "s_nop":
            self.states = int(ops[0], 0) + 1; self.kind = "nop"
        elif op.startswith("v_mfma"):
            self.kind = "mfma"; self.passes = 8 if "32x32x16" in op else 4
            self.w = R[0]; self.a = R[1] | R[2]; self.c = R[3]; self.r = self.a | self.c
        elif op.startswith("v_"):
            self.kind = "valu"
            self.trans = any(op.startswith(x) for x in TRANS)
            self.dot = op.startswith("v_dot")
            self.dpp = ("_dpp" in op) or ("quad_perm" in mods) or ("row_" in mods)
            self.perml = op.startswith("v_permlane")
            self.rdlane = op.startswith("v_readfirstlane") or op.startswith("v_readlane")
            if self.perml:
                self.w = R[0] | R[1]; self.r = R[0] | R[1]
            elif op.startswith("v_cmp"):
                self.w = R[0]; self.r = set().union(*R[1:])
            elif "_co_" in op:
                self.w = R[0] | R[1]; self.r = set().union(*R[2:])
            else:
                self.w = R[0]; self.r = set().union(*R[1:]) if len(R) > 1 else set()
                if op.startswith("v_dot2c") or op.startswith("v_fmac"): self.r |= R[0]
                if op.startswith("v_cndmask") and len(ops) == 3: self.r |= regs_of("vcc")
        elif op.startswith("ds_"):
            self.kind = "ds"
            if "read" in op or "permute" in op or "swizzle" in op:
                self.w = R[0]; self.r = set().union(*R[1:])
            else:
                self.r = set().union(*R)
        elif op.startswith("buffer_") or op.startswith("global_"):
            self.kind = "vmem"
            self.ldsdma = bool(re.search(r"\blds\b", mods))
            self.wide_store = "store" in op and ("x4" in op or "x3" in op)
            if op in ("buffer_inv", "buffer_wbl2"): pass
            elif self.ldsdma: self.r = set().union(*R) | regs_of("m0")
            elif "load" in op: self.w = R[0]; self.r = set().union(*R[1:])
            else:
                self.r = set().union(*R); self.data = R[0]
        elif op.startswith("s_"):
            self.kind = "salu"
            if op.startswith(("s_cmp", "s_bitcmp", "s_waitcnt", "s_barrier", "s_branch", "s_cbranch", "s_endpgm", "s_sleep", "s_setprio")):
                self.r = set().union(*R) if R else set()
            else:
                self.w = R[0] if R else set(); self.r = set().union(*R[1:]) if len(R) > 1 else set()
                if "saveexec" in op: self.w |= regs_of("exec")

def need(p, c):
    n = 0
    V = lambda S: {x for x in S if x[0] in "va"}
    Sg = lambda S: {x for x in S if x[0] == "s"}
    if p.kind == "valu":
        wv = V(p.w); ws = Sg(p.w)
        if c.kind == "mfma" and wv & c.r: n = max(n, 3 if p.dot else 2)
        if c.kind == "valu":
            if p.trans and not c.trans and wv & c.r: n = max(n, 1)
            if c.dpp and wv & c.r: n = max(n, 2)
            if c.perml and wv & c.r: n = max(n, 2)
            if c.rdlane and wv & c.r: n = max(n, 1)
            if ws & c.r: n = max(n, 2)
            if p.dot:
                if c.op == p.op:
                    srcab = set().union(*[regs_of(o) for o in c.ops[1:3]])
                    if wv & srcab: n = max(n, 3)
                elif wv & (c.r | c.w): n = max(n, 3)
        if p.dot and c.kind in ("ds", "vmem") and wv & (c.r | c.w): n = max(n, 3)
        if c.kind == "vmem" and ws & c.r: n = max(n, 5)
        if c.kind == "salu" and ws & c.r: n = max(n, 1)
    if p.kind == "mfma":
        big = 12 if p.passes == 8 else 8
        if c.kind == "mfma":
            if p.w & c.a: n = max(n, big)
            if p.w & c.c and not (p.w == c.c and p.passes == c.passes): n = max(n, big - 2)
            if p.w & c.w and not (p.w == c.c): n = max(n, big - 2)
        elif c.kind in ("valu", "ds", "vmem"):
            if p.w & (c.r | c.w): n = max(n, big)
            if c.kind == "valu" and p.c & c.w: n = max(n, 7 if p.passes == 8 else 3)
    if p.kind == "salu" and ("s", 124) in p.w and c.kind == "vmem" and getattr(c, "ldsdma", False): n = max(n, 1)
    if p.kind == "vmem" and getattr(p, "wide_store", False):
        if p.data & c.w: n = max(n, 2 if c.kind == "valu" else 1)
    return n

class Asm:
    def __init__(self):
        self.L = []
    def __call__(self, s):
        for line in s.split("\n"):
            line = line.strip()
            if line: self.L.append(line)
    def fix_hazards(self, verbose=True):
        I = [Ins(t) for t in self.L]
        labels = {x.label: i for i, x in enumerate(I) if x.label}
        preds = [[] for _ in I]
        for i, x in enumerate(I):
            if i + 1 < len(I) and x.op not in ("s_branch", "s_endpgm"): preds[i + 1].append(i)
            if x.op.startswith(("s_branch", "s_cbranch")):
                preds[labels[x.ops[0]]].append(i)
        extra = [0] * len(I)
        for i, c in enumerate(I):
            if c.kind in ("none", "nop"): continue
            worst = 0; why = None
            stack = [(j, 0) for j in preds[i]]; seen = {}
            while stack:
                j, d = stack.pop()
                if d > 12 or seen.get(j, 99) <= d: continue
                seen[j] = d
                p = I[j]
                if p.kind not in ("none", "nop"):
                    k = need(p, c) - d
                    if k > worst: worst = k; why = p.text
                for q in preds[j]: stack.append((q, d + p.states + extra[j]))
            if worst > 0:
                extra[i] = worst
                if verbose: print(f"  hazard: +{worst} before [{c.text}] after [{why}]")
        out = []
        for i, t in enumerate(self.L):
            if extra[i]: out.append(f"s_nop {extra[i]-1} ; hz")
            out.append(t)
        self.L = out
        return sum(1 for e in extra if e)
    def text(self):
        out = []
        for l in self.L:
            out.append(l if (l.endswith(":") or l.startswith(".") or l.startswith(";")) else "    " + l)
        return "\n".join(out) + "\n"
```

```python
import sys, struct, math
sys.path.insert(0, "gen")
from asmlib import Asm

BASE = "recurrent_scan__sliding_local_dilated__mixer_channel_mlp__prompt"
f2u = lambda x: struct.unpack("<I", struct.pack("<f", x))[0]
hx = lambda x: "0x%08x" % f2u(x)

A_BASE = 0x100000
FLAG_BASE = 0x40000
LOG2E = 1.4426950408889634
NEG = -1.0e30

sX, sWA, sB1, sWS, sDBG, sW2, sWO, sOUT, sB2 = 28, 32, 36, 40, 44, 48, 52, 56, 60
sWAVE, sG, sNT, sTYPE = 64, 65, 66, 67
sONES, sC2 = 80, 81
srd = lambda b: f"s[{b}:{b+3}]"
vr = lambda b, n: f"v[{b}:{b+n-1}]" if n > 1 else f"v{b}"

class Gen:
    def __init__(self, fused, stamps):
        self.a = Asm(); self.fused = fused; self.stamps = stamps
        self.vm = []; self.lg = []
        self.st = "sc1"
    def vmop(self, text, tag): self.a(text); self.vm.append(tag)
    def lgop(self, text, tag): self.a(text); self.lg.append(tag)
    def _wait(self, lst, tags):
        idx = max([i for i, t in enumerate(lst) if t in tags], default=-1)
        return None if idx < 0 else len(lst) - 1 - idx, idx
    def wait_vm(self, *tags):
        n, idx = self._wait(self.vm, tags)
        if n is None: return
        assert n <= 63
        self.a(f"s_waitcnt vmcnt({n})"); self.vm = self.vm[idx + 1:]
    def wait_lg(self, *tags):
        n, idx = self._wait(self.lg, tags)
        if n is None: return
        self.a(f"s_waitcnt lgkmcnt({min(n,15)})")
        assert n <= 15
        self.lg = self.lg[idx + 1:]
    def wait_all(self, vm=True, lg=True):
        self.a("s_waitcnt " + " ".join(x for x, y in (("vmcnt(0)", vm), ("lgkmcnt(0)", lg)) if y))
        if vm: self.vm = []
        if lg: self.lg = []
    def stamp(self, k):
        if self.stamps: self.a(f"s_memrealtime s[{84+2*k}:{85+2*k}]")
    def mksrd(self, d, b, n):
        self.a(f"s_mov_b32 s{d}, s{b}\ns_mov_b32 s{d+1}, s{b+1}\ns_mov_b32 s{d+2}, {n}\ns_mov_b32 s{d+3}, 0x20000")

    def prologue(self, end):
        a = self.a
        a(f"s_cmp_ge_u32 s2, 256\ns_cbranch_scc1 {end}")
        self.stamp(0)
        a("s_load_dwordx16 s[4:19], s[0:1], 0\ns_load_dwordx4 s[20:23], s[0:1], 64\ns_load_dwordx2 s[24:25], s[0:1], 80")
        a("v_and_b32 v1, 63, v0\nv_lshrrev_b32 v12, 6, v0\nv_lshlrev_b32 v2, 4, v1")
        a(f"v_readfirstlane_b32 s{sWAVE}, v12")
        a(f"s_and_b32 s68, s2, 7\ns_lshr_b32 s69, s2, 3")
        a(f"s_and_b32 s{sG}, s68, 1\ns_lshl_b32 s{sG}, s{sG}, 3\ns_lshr_b32 s70, s69, 2\ns_add_u32 s{sG}, s{sG}, s70")
        a(f"s_and_b32 s{sNT}, s68, 6\ns_and_b32 s70, s69, 1\ns_add_u32 s{sNT}, s{sNT}, s70")
        a(f"s_bfe_u32 s{sTYPE}, s69, 0x10001")
        a(f"s_mov_b32 s{sONES}, 0x3f803f80")
        a("s_waitcnt lgkmcnt(0)")
        self.mksrd(sX, 4, 2048 * 896); self.mksrd(sWS, 24, 1 << 28); self.mksrd(sDBG, 22, 256)

    def dma(self, voff, srdb, soff_reg, lds_reg_or_imm, tag):
        self.a(f"s_mov_b32 m0, {lds_reg_or_imm}")
        self.vmop(f"buffer_load_dwordx4 v{voff}, {srd(srdb)}, {soff_reg} offen lds", tag)

    def dma_rows(self, voff, srdb, ts, colbase_s, rowstride8, ldsbase, tag, ldsfn=None):
        a = self.a
        a(f"s_mul_i32 s72, s{sWAVE}, {rowstride8}\ns_add_u32 s72, s72, {colbase_s}\ns_lshl_b32 s73, s{sWAVE}, 10")
        for t in ts:
            lb = ldsbase + t * 8192 if ldsfn is None else ldsfn(t)
            a(f"s_add_u32 m0, s73, {lb}\ns_add_u32 s74, s72, {t*8*rowstride8}")
            self.vmop(f"buffer_load_dwordx4 v{voff}, {srd(srdb)}, s74 offen lds", tag)

    def x_loads(self):
        a = self.a
        a(f"v_lshrrev_b32 v3, 3, v0\ns_lshl_b32 s70, s{sWAVE}, 3\nv_add_u32 v3, s70, v3\nv_mul_u32_u24 v3, 896, v3")
        a("v_and_b32 v12, 7, v0\nv_lshl_add_u32 v3, v12, 4, v3")
        a(f"s_mul_i32 s70, s{sG}, {128*896}\ns_add_u32 s71, s70, {8*896}")
        for grp in range(2):
            for j in range(7):
                self.vmop(f"buffer_load_dwordx4 {vr(32+(grp*7+j)*4,4)}, v3, {srd(sX)}, s{70+grp} offen offset:{128*j}", f"x{grp}{j}")

    def dma_voff(self, stride):
        a = self.a
        a(f"v_lshrrev_b32 v12, 3, v1\nv_mul_u32_u24 v4, {stride}, v12")
        a(f"v_lshrrev_b32 v13, 2, v1\nv_and_b32 v13, 4, v13\ns_and_b32 s70, s{sWAVE}, 1\ns_lshl_b32 s70, s70, 1\nv_or_b32 v13, s70, v13")
        a("v_and_b32 v12, 7, v1\nv_xor_b32 v12, v12, v13\nv_lshl_add_u32 v4, v12, 4, v4")

    def reduce_dpp(self, regs, wide):
        a = self.a
        steps = ["quad_perm:[1,0,3,2]", "quad_perm:[2,3,0,1]", "row_half_mirror"] + (["row_mirror"] if wide else [])
        for st in steps:
            for r in regs:
                a(f"v_add_f32_dpp v{r}, v{r}, v{r} {st} row_mask:0xf bank_mask:0xf")
        if wide:
            for r in regs:
                a(f"v_mov_b32 v{r+4}, v{r}")
            for r in regs:
                a(f"v_permlane16_swap_b32 v{r}, v{r+4}")
            for r in regs:
                a(f"v_add_f32 v{r}, v{r}, v{r+4}")

    def ln_scale(self, s1, s2, second):
        a = self.a; t = s2 + 1
        a(f"v_mul_f32 v{s1}, {hx(1/448)}, v{s1}\nv_mul_f32 v{s2}, {hx(1/448)}, v{s2}")
        a(f"v_fma_f32 v{s2}, -v{s1}, v{s1}, v{s2}\nv_max_f32 v{s2}, 0, v{s2}")
        a(f"v_add_f32 v{t}, {hx(1e-5)}, v{s2}\nv_rsq_f32 v{t}, v{t}")
        if second:
            a(f"v_mul_f32 v{s2}, v{s2}, v{t}\nv_mul_f32 v{s2}, v{s2}, v{t}\nv_add_f32 v{s2}, {hx(1e-5)}, v{s2}\nv_rsq_f32 v{s2}, v{s2}")
            a(f"v_mul_f32 v{t}, v{t}, v{s2}")
        a(f"v_cvt_pk_bf16_f32 v{t}, v{t}, 0\nv_lshlrev_b32 v{s2}, 16, v{t}")
        a(f"v_mul_f32 v{t+1}, v{s1}, v{s2}\nv_mov_b32 v{s1}, v{t}\nv_sub_f32 v{t}, 0, v{t+1}")

    def stats(self, base, n, s1, s2, tags):
        a = self.a
        a(f"v_mov_b32 v{s1}, 0\nv_mov_b32 v{s2}, 0")
        for j in range(n):
            self.wait_vm(tags[j])
            for k in range(4):
                r = base + 4 * j + k
                a(f"v_dot2c_f32_bf16 v{s1}, s{sONES}, v{r}\nv_dot2c_f32_bf16 v{s2}, v{r}, v{r}")

    def normalize(self, base, clo, chi, nm, tmp):
        a = self.a
        for k in range(4):
            a(f"v_dot2_f32_bf16 v{tmp+2*k}, v{base+k}, v{clo}, v{nm}\nv_dot2_f32_bf16 v{tmp+2*k+1}, v{base+k}, v{chi}, v{nm}")
        for k in range(4):
            a(f"v_cvt_pk_bf16_f32 v{base+k}, v{tmp+2*k}, v{tmp+2*k+1}")

    def ln_main(self, second, qtype):
        a = self.a
        a(f"v_lshrrev_b32 v12, 3, v1\ns_lshl_b32 s70, s{sWAVE}, 4")
        if qtype: a(f"s_and_b32 s71, s{sWAVE}, 4\ns_lshl_b32 s71, s71, 2\ns_add_u32 s70, s70, s71")
        a("v_add_u32 v12, s70, v12\nv_mul_u32_u24 v12, 896, v12\nv_lshrrev_b32 v13, 4, v1\nv_and_b32 v14, 7, v1\nv_xor_b32 v13, v13, v14")
        a(f"v_lshl_add_u32 v6, v13, 4, v12\nv_xor_b32 v13, 4, v13\nv_lshl_add_u32 v7, v13, 4, v12\nv_add_u32 v7, {8*896}, v7")
        S = [(104, 105), (112, 113)]
        for grp in range(2):
            s1, s2 = S[grp]
            self.stats(32 + grp * 28, 7, s1, s2, [f"x{grp}{j}" for j in range(7)])
            self.reduce_dpp([s1, s2], False)
            self.ln_scale(s1, s2, second)
            for j in range(7):
                b = 32 + (grp * 7 + j) * 4
                self.normalize(b, s1, s2, s2 + 1, 96)
                self.lgop(f"ds_write_b128 v{6+grp}, {vr(b,4)} offset:{128*j}", "xw")
        self.lg = []

    def gelu_store(self, acc, soff):
        a = self.a; T = 232
        for h in range(2):
            x = acc + 8 * h
            for k in range(8): a(f"v_mul_f32 v{T+k}, v{x+k}, v{x+k}")
            for k in range(8): a(f"v_fma_f32 v{T+k}, v{T+k}, s{sC2}, v27")
            for k in range(8): a(f"v_mul_f32 v{T+k}, v{T+k}, v{x+k}")
            for k in range(8): a(f"v_exp_f32 v{T+k}, v{T+k}")
            for k in range(8): a(f"v_add_f32 v{T+k}, 1.0, v{T+k}")
            for k in range(8): a(f"v_rcp_f32 v{T+k}, v{T+k}")
            for k in range(8): a(f"v_mul_f32 v{T+k}, v{x+k}, v{T+k}")
            P = 240 + 4 * h
            for k in range(4): a(f"v_cvt_pk_bf16_f32 v{P+k}, v{T+2*k}, v{T+2*k+1}")
            self.vmop(f"buffer_store_dwordx4 {vr(P,4)}, v2, {srd(sWS)}, {soff} offen offset:{1024*h} {self.st}", "st")

    def h_chain(self, acc, addr, steps, depth=4):
        WF = lambda s: 208 + 4 * (s % 6)
        steps = list(steps)
        def rd(s):
            for q in range(2):
                vb, imm = addr(s, q)
                self.lgop(f"ds_read_b64_tr_b16 {vr(WF(s)+2*q,2)}, v{vb} offset:{imm}", f"w{s}")
        for s in steps[:depth]: rd(s)
        for n, s in enumerate(steps):
            self.wait_lg(f"w{s}")
            self.a(f"v_mfma_f32_32x32x16_bf16 {vr(acc,16)}, {vr(WF(s),4)}, {vr(32+4*s,4)}, {vr(acc,16)}")
            if n + depth < len(steps): rd(steps[n + depth])

    def type_h(self, grpB):
        a = self.a; L = "HB" if grpB else "HA"
        R0, R1, R2 = 0, 57344, 114688
        EARLY = R2 + 28672
        self.vm = []; self.lg = []
        a(f"L_{L}:")
        self.x_loads()
        self.mksrd(sWA, 12, 448 * 3584); self.mksrd(sB1, 14, 3584)
        a(f"s_lshr_b32 s70, s{sNT}, 1\ns_mul_i32 s70, s70, 896\ns_and_b32 s71, s{sNT}, 1\ns_lshl_b32 s75, s71, 9\ns_add_u32 s75, s75, s70")
        a("s_lshl_b32 s76, s71, 6\ns_add_u32 s76, s76, s70\ns_add_u32 s76, s76, 384")
        self.dma_voff(3584)
        a("v_lshrrev_b32 v12, 2, v1\nv_mul_u32_u24 v5, 3584, v12\nv_and_b32 v12, 3, v1\nv_lshl_add_u32 v5, v12, 4, v5")
        self.dma_rows(5, sWA, range(3 if grpB else 4), "s76", 16 * 3584, R2, "S")
        self.dma_rows(4, sWA, range(2 if grpB else 3), "s75", 8 * 3584, EARLY, "E")
        if grpB: blocks = [("s75", 0), ("s75", 128), ("s75", 256)]
        else: blocks = [("s76", 0), ("s75", 64), ("s75", 192), ("s75", 320)]
        a("v_lshrrev_b32 v12, 5, v1\nv_lshlrev_b32 v12, 3, v12")
        for b, (sb, off) in enumerate(blocks):
            for j in range(4):
                self.vmop(f"buffer_load_dwordx2 {vr(208+8*b+2*j,2)}, v12, {srd(sB1)}, {sb} offen offset:{off+16*j}", "bias")
        self.leader_reset()
        c1 = -2.0 * math.sqrt(2.0 / math.pi) * LOG2E
        a(f"v_mov_b32 v27, {hx(c1)}\ns_mov_b32 s{sC2}, {hx(c1*0.044715)}")
        a(f"v_and_b32 v12, 31, v1\ns_and_b32 s70, s{sWAVE}, 3\ns_lshl_b32 s70, s70, 5\nv_add_u32 v13, s70, v12\nv_mul_u32_u24 v13, 896, v13")
        a("v_bfe_u32 v12, v1, 1, 3\nv_lshrrev_b32 v14, 5, v1\nv_xor_b32 v12, v12, v14")
        for i in range(4):
            a(f"v_xor_b32 v14, {2*i}, v12\nv_lshl_add_u32 v{8+i}, v14, 4, v13")
        a("v_lshrrev_b32 v12, 5, v1\nv_bfe_u32 v13, v1, 2, 2\nv_lshl_add_u32 v14, v12, 3, v13")
        a("v_bfe_u32 v15, v1, 4, 1\nv_lshlrev_b32 v15, 1, v15\nv_bfe_u32 v16, v1, 1, 1\nv_or_b32 v15, v15, v16")
        a("v_lshrrev_b32 v16, 1, v13\nv_lshlrev_b32 v16, 2, v16\nv_lshl_or_b32 v16, v12, 1, v16")
        a(f"v_xor_b32 v16, v15, v16\nv_xor_b32 v16, {0 if grpB else 4}, v16\nv_lshlrev_b32 v16, 4, v16")
        a("v_and_b32 v17, 1, v1\nv_lshl_or_b32 v16, v17, 3, v16\nv_lshl_add_u32 v24, v14, 7, v16")
        a(f"v_add_u32 v25, {R1}, v24\nv_add_u32 v28, {EARLY}, v24")
        a(f"v_lshlrev_b32 v15, 4, v15\nv_lshl_or_b32 v15, v17, 3, v15\nv_lshl_add_u32 v26, v14, 6, v15\nv_add_u32 v26, {R2}, v26")
        a(f"s_and_b32 s70, s{sWAVE}, 3\ns_lshl_b32 s77, s{sG}, 2\ns_add_u32 s77, s77, s70\ns_mul_i32 s77, s77, {144*1024}\ns_add_u32 s77, s77, {A_BASE}")
        a("s_lshl_b32 s78, s75, 5\ns_add_u32 s78, s78, s77\ns_lshl_b32 s79, s76, 5\ns_add_u32 s79, s79, s77")
        self.stamp(1)
        self.ln_main(True, False)
        self.wait_all(lg=False)
        for b in range(len(blocks)):
            for j in range(8):
                r = 208 + 8 * b + j
                a(f"v_lshlrev_b32 v{144+16*b+2*j}, 16, v{r}\nv_and_b32 v{144+16*b+2*j+1}, 0xffff0000, v{r}")
        self.wait_all(); a("s_barrier")
        self.stamp(2)
        for s in range(28):
            a(f"ds_read_b128 {vr(32+4*s,4)}, v{8+(s&3)} offset:{128*(s>>2)}")
        self.wait_all(vm=False); a("s_barrier")
        self.stamp(3)
        self.dma_rows(4, sWA, ([2] if grpB else []) + [3, 4, 5, 6], "s75", 8 * 3584, R0, "L")
        a("s_add_u32 s71, s75, 128")
        self.dma_rows(4, sWA, range(7), "s71", 8 * 3584, R1, "D1")
        adS = lambda s, q: (26, 1024 * s + 256 * q)
        ad0 = lambda s, q: (28 if s < 10 else 24, 2048 * s + 512 * q)
        ad1 = lambda s, q: (25, 2048 * s + 512 * q)
        ad2 = lambda s, q: (24, 2048 * s + 512 * q)
        def soff(base, add):
            a(f"s_add_u32 s71, {base}, {add*32}"); return "s71"
        def db2():
            a("s_add_u32 s71, s75, 256")
            self.dma_rows(4, sWA, range(7), "s71", 8 * 3584, R0, "D2")
        if not grpB:
            a("s_setprio 1")
            self.h_chain(144, adS, range(28))
            self.wait_vm("L"); a("s_barrier")
            self.gelu_store(144, "s79")
            self.h_chain(160, ad0, range(28))
            self.wait_vm("D1"); a("s_barrier"); db2()
            self.gelu_store(160, soff("s78", 64))
            self.h_chain(176, ad1, range(28))
            self.gelu_store(176, soff("s78", 192))
            self.wait_vm("D2"); a("s_barrier")
            self.h_chain(192, ad2, range(28))
            self.gelu_store(192, soff("s78", 320))
            a("s_setprio 0")
        else:
            self.h_chain(144, ad0, range(10))
            self.wait_vm("L"); a("s_barrier")
            self.h_chain(144, ad0, range(10, 28))
            self.gelu_store(144, "s78")
            self.wait_vm("D1"); a("s_barrier"); db2()
            self.h_chain(160, ad1, range(28))
            self.gelu_store(160, soff("s78", 128))
            self.wait_vm("D2"); a("s_barrier")
            self.h_chain(176, ad2, range(28))
            self.gelu_store(176, soff("s78", 256))
        a("s_branch L_P1END")

    def q_round(self, kind, steps, halo_db, wb):
        steps = list(steps)
        WF = lambda s, db: 208 + 8 * (s % 3) + 4 * db
        HF = lambda s: 232 + 4 * (s % 3)
        def rd(s):
            b0, b1, imm = wb(s)
            for db in range(2):
                for q in range(2):
                    self.lgop(f"ds_read_b64_tr_b16 {vr(WF(s,db)+2*q,2)}, v{(b0,b1)[db]} offset:{imm+512*q}", f"w{s}")
            if halo_db is not None:
                self.lgop(f"ds_read_b128 {vr(HF(s),4)}, v{10+(s&1)} offset:{128*(s>>1)}", f"w{s}")
        def mf(acc, w, x, first):
            aa, bb = (x, w) if kind == "v" else (w, x)
            c = "0" if first else vr(acc, 4)
            self.a(f"v_mfma_f32_16x16x32_bf16 {vr(acc,4)}, {vr(aa,4)}, {vr(bb,4)}, {c}")
        for s in steps[:2]: rd(s)
        for n, s in enumerate(steps):
            self.wait_lg(f"w{s}")
            for tb in range(2):
                for db in range(2):
                    mf(144 + 8 * tb + 4 * db, WF(s, db), 32 + 4 * (14 * tb + s), s == 0)
            if halo_db is not None: mf(160, WF(s, halo_db), HF(s), s == 0)
            if n + 2 < len(steps): rd(steps[n + 2])

    def type_q(self):
        a = self.a
        QE, QL, XB = 131072, 71680, 96256
        KP, VP, QP = 164, 176, 188
        MC, MP, MP0, PM = 196, 200, 204, 244
        self.vm = []; self.lg = []
        a("L_Q:")
        self.x_loads()
        a(f"s_lshl_b32 s70, s{sG}, 7\ns_lshl_b32 s71, s{sWAVE}, 1\ns_add_u32 s70, s70, s71\ns_sub_u32 s70, s70, 16\ns_mul_i32 s70, s70, 896")
        a("v_lshrrev_b32 v12, 5, v1\nv_mul_u32_u24 v12, 896, v12\nv_and_b32 v13, 31, v1\nv_lshl_add_u32 v5, v13, 4, v12\nv_add_u32 v5, s70, v5")
        a("v_mov_b32 v14, 0x80000000\nv_cmp_gt_u32 vcc, 28, v13\nv_cndmask_b32 v5, v14, v5, vcc")
        for jj in range(2):
            self.vmop(f"buffer_load_dwordx4 {vr(88+4*jj,4)}, v5, {srd(sX)}, 0 offen offset:{448*jj}", f"hx{jj}")
        self.mksrd(sWA, 6, 448 * 2688)
        self.dma_voff(2688)
        a(f"s_mul_i32 s75, s{sNT}, 112\ns_add_u32 s76, s75, 896\ns_add_u32 s77, s75, 1792")
        self.dma_rows(4, sWA, range(4), "s76", 8 * 2688, QE, "E")
        a(f"s_and_b32 s70, s{sWAVE}, 3\ns_lshl_b32 s71, s70, 5\ns_and_b32 s70, s70, 2\ns_lshl_b32 s70, s70, 3\ns_add_u32 s70, s70, s71\ns_mul_i32 s70, s70, 896")
        a("v_and_b32 v12, 15, v1\nv_mul_u32_u24 v13, 896, v12\nv_bfe_u32 v12, v1, 1, 3\nv_lshrrev_b32 v14, 4, v1\nv_xor_b32 v12, v12, v14")
        a("v_lshl_add_u32 v10, v12, 4, v13\nv_xor_b32 v12, 4, v12\nv_lshl_add_u32 v11, v12, 4, v13")
        a(f"v_add_u32 v8, s70, v10\nv_add_u32 v9, s70, v11\nv_add_u32 v10, {64*896}, v10\nv_add_u32 v11, {64*896}, v11")
        a(f"s_lshr_b32 s70, s{sWAVE}, 2\ns_mul_i32 s70, s70, 56")
        a("v_lshrrev_b32 v12, 4, v1\nv_bfe_u32 v13, v1, 2, 2\nv_lshl_add_u32 v14, v12, 3, v13\nv_lshlrev_b32 v14, 7, v14")
        a("v_lshrrev_b32 v13, 1, v13\nv_lshlrev_b32 v13, 6, v13\nv_and_b32 v12, 1, v12\nv_lshl_or_b32 v13, v12, 5, v13")
        a("v_and_b32 v12, 3, v1\nv_lshlrev_b32 v12, 3, v12\nv_add_u32 v12, s70, v12")
        a("v_xor_b32 v15, v12, v13\nv_add_u32 v24, v14, v15\nv_add_u32 v12, 32, v12\nv_xor_b32 v15, v12, v13\nv_add_u32 v25, v14, v15")
        a(f"v_add_u32 v26, {QE}, v24\nv_add_u32 v27, {QE}, v25\nv_add_u32 v28, {QL}, v24\nv_add_u32 v29, {QL}, v25")
        a(f"v_lshrrev_b32 v12, 5, v1\ns_lshl_b32 s70, s{sWAVE}, 1\ns_add_u32 s70, s70, 64\nv_add_u32 v12, s70, v12\nv_bfe_u32 v13, v12, 1, 3\nv_mul_u32_u24 v12, 896, v12")
        a("v_and_b32 v14, 31, v1\nv_xor_b32 v15, v14, v13\nv_lshl_add_u32 v16, v15, 4, v12\nv_add_u32 v14, 28, v14\nv_xor_b32 v15, v14, v13\nv_lshl_add_u32 v17, v15, 4, v12")
        a(f"s_lshr_b32 s70, s{sWAVE}, 2\ns_mul_i32 s70, s70, 10240\ns_add_u32 s70, s70, {XB}\nv_add_u32 v18, s70, v2")
        a(f"s_and_b32 s71, s{sWAVE}, 3\ns_lshl_b32 s71, s71, 11\nv_add_u32 v31, s71, v18\nv_add_u32 v30, 2048, v31")
        a("v_and_b32 v12, 15, v1\nv_lshrrev_b32 v13, 4, v1\nv_lshlrev_b32 v13, 2, v13\nv_sub_u32 v12, v12, v13")
        a(f"v_mov_b32 v14, {hx(NEG)}\nv_mov_b32 v15, 0")
        a(f"s_and_b32 s70, s{sWAVE}, 3\ns_or_b32 s70, s70, s{sG}\ns_cmp_eq_u32 s70, 0\ns_cselect_b32 s78, {hx(NEG)}, 0")
        for r in range(4):
            a(f"v_subrev_u32 v13, {r}, v12\nv_and_b32 v19, 0x80000001, v13")
            a(f"v_cmp_eq_u32 vcc, 0, v19\nv_cndmask_b32 v{MC+r}, v14, v15, vcc")
            a(f"v_mov_b32 v20, {'0xffff0000' if r&1 else '0x0000ffff'}\nv_cndmask_b32 v{21+(r&1)}, v15, v20, vcc")
            if r & 1: a(f"v_or_b32 v{PM+2+(r>>1)}, v21, v22")
            a(f"v_cmp_eq_u32 vcc, 0x80000000, v19\nv_cndmask_b32 v{MP+r}, v14, v15, vcc\nv_cndmask_b32 v{252+(r&1)}, v15, v20, vcc")
            if r & 1: a(f"v_or_b32 v{PM+(r>>1)}, v252, v253")
            a(f"v_min_f32 v{MP0+r}, s78, v{MP+r}")
        qs = 28 ** -0.5 * LOG2E
        a(f"v_cmp_gt_u32 vcc, 48, v1\nv_mov_b32 v19, {hx(qs)}\nv_cndmask_b32 v20, v15, v19, vcc\nv_cndmask_b32 v21, 0, -1, vcc")
        a("v_lshrrev_b32 v12, 4, v1\nv_and_b32 v13, 15, v1\nv_lshlrev_b32 v13, 4, v13\nv_lshl_add_u32 v22, v12, 9, v13")
        a(f"s_and_b32 s70, s{sWAVE}, 3\ns_lshl_b32 s79, s{sG}, 2\ns_add_u32 s79, s79, s70\ns_mul_i32 s79, s79, 144\ns_lshr_b32 s70, s{sWAVE}, 2\ns_lshl_b32 s71, s{sNT}, 1\ns_add_u32 s70, s70, s71\ns_lshl_b32 s70, s70, 1")
        a(f"s_add_u32 s79, s79, s70\ns_add_u32 s79, s79, 112\ns_lshl_b32 s79, s79, 10\ns_add_u32 s79, s79, {A_BASE}")
        self.stamp(1)
        self.ln_main(False, True)
        self.stats(88, 2, 104, 105, ["hx0", "hx1"])
        self.reduce_dpp([104, 105], True)
        self.ln_scale(104, 105, False)
        a("s_mov_b32 s70, 0x0fffffff\ns_mov_b32 s71, 0x0fffffff")
        for jj in range(2):
            self.normalize(88 + 4 * jj, 104, 105, 106, 96)
        a("s_mov_b64 exec, s[70:71]")
        for jj in range(2):
            a(f"ds_write_b128 v{16+jj}, {vr(88+4*jj,4)}")
        a("s_mov_b64 exec, -1")
        self.wait_all(); a("s_barrier")
        self.stamp(2)
        for tb in range(2):
            for s in range(14):
                a(f"ds_read_b128 {vr(32+4*(14*tb+s),4)}, v{8+(s&1)} offset:{128*(s>>1)+14336*tb}")
        self.wait_all(vm=False); a("s_barrier")
        self.stamp(3)
        self.dma_rows(4, sWA, [4, 5, 6], "s76", 8 * 2688, QL - 32768, "L")
        self.dma_rows(4, sWA, range(7), "s77", 8 * 2688, 0, "V")
        wbk = lambda s: (26, 27, 4096 * s) if s < 8 else (28, 29, 4096 * (s - 8))
        wbv = lambda s: (24, 25, 4096 * s)
        a(f"s_and_b32 s70, s{sWAVE}, 3\ns_cmp_eq_u32 s70, 1\ns_cbranch_scc1 L_Q1\ns_cmp_eq_u32 s70, 2\ns_cbranch_scc1 L_Q2\ns_cmp_eq_u32 s70, 3\ns_cbranch_scc1 L_Q3")
        vm0 = list(self.vm)
        for qt in range(4):
            self.vm = list(vm0); self.lg = []
            a(f"L_Q{qt}:")
            hk = qt if qt < 2 else None
            hv = qt - 2 if qt >= 2 else None
            self.q_round("k", range(8), hk, wbk)
            self.wait_vm("L"); a("s_barrier")
            self.q_round("k", range(8, 14), hk, wbk)
            self.wait_vm("V"); a("s_barrier")
            self.dma_rows(4, sWA, range(7), "s75", 8 * 2688, 0, "Q", ldsfn=lambda t: QE + t * 8192 if t < 4 else QL + (t - 4) * 8192)
            for tb in range(2):
                for k in range(4):
                    a(f"v_cvt_pk_bf16_f32 v{KP+4*(tb+1)+k}, v{144+8*tb+2*k}, v{144+8*tb+2*k+1}")
            a(f"ds_write_b128 v30, {vr(KP+8,4)}")
            if hk is not None:
                a("v_cvt_pk_bf16_f32 v248, v160, v161\nv_cvt_pk_bf16_f32 v249, v162, v163")
                a(f"ds_write_b64 v18, v[248:249] offset:{8*hk}")
            self.lg = ["x"] * (1 if hk is None else 2)
            self.q_round("v", range(14), hv, wbv)
            for tb in range(2):
                for db in range(2):
                    for k in range(2):
                        r = 144 + 8 * tb + 4 * db + 2 * k
                        a(f"v_cvt_pk_bf16_f32 v{VP+6*db+2+2*tb+k}, v{r}, v{r+1}")
            for db in range(2):
                a(f"ds_write_b64 v30, {vr(VP+6*db+4,2)} offset:{1024+8*db}")
            if hv is not None:
                a("v_cvt_pk_bf16_f32 v248, v160, v161\nv_cvt_pk_bf16_f32 v249, v162, v163")
                a(f"ds_write_b64 v18, v[248:249] offset:{1024+8*hv}")
            if qt < 3: a("s_branch L_QC")
        a("L_QC:")
        self.wait_all(); a("s_barrier")
        a(f"ds_read_b128 {vr(KP,4)}, v31")
        for db in range(2):
            a(f"ds_read_b64 {vr(VP+6*db,2)}, v31 offset:{1024+8*db}")
        self.lg = ["x"] * 3
        self.q_round("q", range(14), None, wbk)
        for tb in range(2):
            for db in range(2):
                for k in range(4):
                    r = 144 + 8 * tb + 4 * db + k
                    a(f"v_mul_f32 v{r}, v{19+db}, v{r}")
            for k in range(4):
                a(f"v_cvt_pk_bf16_f32 v{QP+4*tb+k}, v{144+8*tb+2*k}, v{144+8*tb+2*k+1}")
        for tb in range(2):
            a(f"v_mfma_f32_16x16x32_bf16 {vr(144+8*tb,4)}, {vr(KP+4*tb,4)}, {vr(QP+4*tb,4)}, {vr(MP0 if tb==0 else MP,4)}")
            a(f"v_mfma_f32_16x16x32_bf16 {vr(148+8*tb,4)}, {vr(KP+4*tb+4,4)}, {vr(QP+4*tb,4)}, {vr(MC,4)}")
        E = 208
        both = lambda f: [a(f(tb, 144 + 8 * tb, E + 4 * tb)) for tb in range(2)]
        both(lambda tb, s, e: f"v_max3_f32 v{e}, v{s}, v{s+1}, v{s+4}")
        both(lambda tb, s, e: f"v_max3_f32 v{e+1}, v{s+2}, v{s+3}, v{s+6}")
        both(lambda tb, s, e: f"v_max_f32 v{e}, v{e}, v{s+5}")
        both(lambda tb, s, e: f"v_max_f32 v{e+1}, v{e+1}, v{s+7}")
        both(lambda tb, s, e: f"v_max_f32 v{e+2}, v{e}, v{e+1}")
        for sw in ("16", "32"):
            both(lambda tb, s, e: f"v_mov_b32 v{e+3}, v{e+2}")
            both(lambda tb, s, e: f"v_permlane{sw}_swap_b32 v{e+2}, v{e+3}")
            both(lambda tb, s, e: f"v_max_f32 v{e+2}, v{e+2}, v{e+3}")
        both(lambda tb, s, e: f"v_sub_f32 v{e}, v{e}, v{e+2}")
        both(lambda tb, s, e: f"v_sub_f32 v{e+1}, v{e+1}, v{e+2}")
        both(lambda tb, s, e: f"v_exp_f32 v{e}, v{e}")
        both(lambda tb, s, e: f"v_exp_f32 v{e+1}, v{e+1}")
        both(lambda tb, s, e: f"v_add_f32 v{e+2}, v{e}, v{e+1}")
        for sw in ("16", "32"):
            both(lambda tb, s, e: f"v_mov_b32 v{e+3}, v{e+2}")
            both(lambda tb, s, e: f"v_permlane{sw}_swap_b32 v{e+2}, v{e+3}")
            both(lambda tb, s, e: f"v_add_f32 v{e+2}, v{e+2}, v{e+3}")
        both(lambda tb, s, e: f"v_rcp_f32 v{e+2}, v{e+2}")
        both(lambda tb, s, e: f"v_mul_f32 v{e}, v{e}, v{e+2}")
        both(lambda tb, s, e: f"v_mul_f32 v{e+1}, v{e+1}, v{e+2}")
        both(lambda tb, s, e: f"v_cvt_pk_bf16_f32 v{e}, v{e}, v{e}")
        both(lambda tb, s, e: f"v_cvt_pk_bf16_f32 v{e+1}, v{e+1}, v{e+1}")
        P = 216
        for k in range(4):
            both(lambda tb, s, e: f"v_and_b32 v{P+4*tb+k}, v{PM+k}, v{e+(k&1)}")
        for tb in range(2):
            for db in range(2):
                a(f"v_mfma_f32_16x16x32_bf16 {vr(144+8*tb+4*db,4)}, {vr(VP+6*db+2*tb,4)}, {vr(P+4*tb,4)}, 0")
        for tb in range(2):
            O = 224 + 4 * tb
            for k in range(4):
                a(f"v_cvt_pk_bf16_f32 v{O+k}, v{144+8*tb+2*k}, v{144+8*tb+2*k+1}")
            a(f"v_and_b32 v{O+2}, v21, v{O+2}\nv_and_b32 v{O+3}, v21, v{O+3}")
            a(f"buffer_store_dwordx4 {vr(O,4)}, v22, {srd(sWS)}, s79 offen offset:{256*tb} {self.st}")

    def leader_reset(self):
        if not self.fused: return
        pass

    def phase1(self):
        a = self.a
        a(f"s_cmp_eq_u32 s{sTYPE}, 1\ns_cbranch_scc1 L_Q\ns_cmp_ge_u32 s{sWAVE}, 4\ns_cbranch_scc1 L_HB")
        self.type_h(False); self.type_h(True); self.type_q()
        a("L_P1END:")
        self.stamp(4)

    def phase2(self, end):
        a = self.a
        self.vm = []; self.lg = []
        sM2, sN2, sP, sMH = 65, 66, 67, 75
        a(f"s_lshr_b32 s69, s2, 3\ns_cmp_ge_u32 s69, 28\ns_cbranch_scc1 {end}")
        a(f"s_and_b32 s68, s2, 7\ns_lshl_b32 s{sM2}, s68, 2\ns_and_b32 s70, s69, 3\ns_add_u32 s{sM2}, s{sM2}, s70\ns_lshr_b32 s{sN2}, s69, 2")
        self.mksrd(sW2, 16, 1792 * 896); self.mksrd(sWO, 8, 448 * 896); self.mksrd(sOUT, 20, 2048 * 896); self.mksrd(sB2, 18, 896)
        a(f"s_and_b32 s{sMH}, s{sWAVE}, 1")
        a(f"v_lshrrev_b32 v12, 3, v1\ns_lshl_b32 s70, s{sMH}, 3\nv_add_u32 v12, s70, v12\nv_mul_u32_u24 v4, 896, v12")
        a("v_lshrrev_b32 v13, 2, v1\nv_and_b32 v13, 4, v13\nv_and_b32 v12, 7, v1\nv_xor_b32 v12, v12, v13\nv_lshl_add_u32 v4, v12, 4, v4")
        a("v_lshrrev_b32 v12, 5, v1\nv_bfe_u32 v13, v1, 2, 2\nv_lshl_add_u32 v14, v12, 2, v13")
        a("v_bfe_u32 v15, v1, 4, 1\nv_lshlrev_b32 v15, 1, v15\nv_bfe_u32 v12, v1, 1, 1\nv_or_b32 v15, v15, v12")
        a("v_lshrrev_b32 v13, 1, v13\nv_lshlrev_b32 v13, 2, v13\nv_xor_b32 v15, v15, v13\nv_lshlrev_b32 v15, 4, v15")
        a("v_and_b32 v12, 1, v1\nv_lshl_or_b32 v15, v12, 3, v15\nv_lshl_add_u32 v5, v14, 7, v15\nv_xor_b32 v6, 64, v5")
        a(f"s_lshl_b32 s70, s{sM2}, 1\ns_add_u32 s70, s70, s{sMH}\ns_mul_i32 s76, s70, {144*1024}\ns_add_u32 s76, s76, {A_BASE}")
        a(f"s_lshl_b32 s70, s70, 5\nv_and_b32 v12, 31, v1\nv_add_u32 v12, s70, v12\nv_mul_u32_u24 v3, 896, v12\nv_lshrrev_b32 v12, 5, v1\nv_lshlrev_b32 v7, 3, v12")
        a(f"s_lshl_b32 s77, s{sN2}, 7\nv_add3_u32 v3, v3, v7, s77")
        a(f"s_lshl_b32 s73, s{sMH}, 10")
        a(f"s_cmp_ge_u32 s{sWAVE}, 6\ns_cbranch_scc1 L_P2\ns_cmp_ge_u32 s{sWAVE}, 4\ns_cbranch_scc1 L_P3\ns_cmp_ge_u32 s{sWAVE}, 2\ns_cbranch_scc1 L_P1")
        first = [0, 40, 76, 112]; nL = [24, 20, 20, 16]
        b2lds = [0, 49152, 90112, 131072]
        row2 = [0, 640, 1216, 0]; row1 = [384, 960, 1536, 224]
        n2i = [48, 40, 40, 29]; n1i = [32, 32, 32, 29]
        ACC, BR, AF, BF = 96, 128, 32, 16
        for p in range(4):
            self.vm = []; self.lg = []
            a(f"L_P{p}:")
            wsrd = sWO if p == 3 else sW2
            def dmab(row0, n, lds, tag):
                for t in range((n + 1) // 2):
                    last_odd = (2 * t + 1 >= n)
                    if last_odd: a(f"s_cmp_eq_u32 s{sMH}, 1\ns_cbranch_scc1 L_P{p}_{tag}skip")
                    a(f"s_add_u32 m0, s73, {lds + 2048 * t}\ns_add_u32 s74, s77, {(row0 + 16 * t) * 896}")
                    self.vmop(f"buffer_load_dwordx4 v4, {srd(wsrd)}, s74 offen lds", tag)
                    if last_odd: a(f"L_P{p}_{tag}skip:")
            def imm(sl, q):
                return (sl * 2048 + q * 1024) if p < 3 else (28 * (sl >> 1) + 8 * (sl & 1) + 16 * q) * 128
            dmab(row1[p], n1i[p], 32768 * p, "B1")
            for j in range(2):
                self.vmop(f"buffer_load_dwordx2 {vr(12+2*j,2)}, v3, {srd(sX)}, 0 offen offset:{32*p+16*j}", "xr")
            if p == 0:
                for nb in range(2):
                    for j in range(4):
                        self.vmop(f"buffer_load_dwordx2 {vr(AF+8*nb+2*j,2)}, v7, {srd(sB2)}, s77 offen offset:{64*nb+16*j}", "b2")
            a(f"v_add_u32 v8, {32768*p}, v5\nv_add_u32 v9, {32768*p}, v6\nv_add_u32 v10, {b2lds[p]}, v5\nv_add_u32 v11, {b2lds[p]}, v6")
            self.wait_all(lg=False); a("s_barrier")
            self.stamp(5)
            for sl in range(16):
                for nb in range(2):
                    for q in range(2):
                        a(f"ds_read_b64_tr_b16 {vr(BR+8*sl+4*nb+2*q,2)}, v{8+nb} offset:{imm(sl,q)}")
            if p == 0:
                for j in range(16):
                    a(f"v_lshlrev_b32 v{ACC+2*j}, 16, v{AF+j}\nv_and_b32 v{ACC+2*j+1}, 0xffff0000, v{AF+j}")
            self.wait_all(vm=False); a("s_barrier")
            dmab(row2[p], n2i[p], b2lds[p], "B2")
            odd_tail = n2i[p] & 1
            self.poll(p)
            self.stamp(6)
            nst = nL[p] + 16
            ld = self.st if self.fused else ""
            def lda(n):
                s = first[p] + n
                a(f"s_add_u32 s74, s76, {s*1024}")
                self.vmop(f"buffer_load_dwordx4 {vr(AF+4*(n%16),4)}, v2, {srd(sWS)}, s74 offen {ld}", f"a{n}")
            for n in range(16): lda(n)
            self.wait_vm("B2"); a("s_barrier")
            def rdb(n):
                for nb in range(2):
                    for q in range(2):
                        self.lgop(f"ds_read_b64_tr_b16 {vr(BF+8*(n&1)+4*nb+2*q,2)}, v{10+nb} offset:{imm(n,q)}", f"b{n}")
            rdb(0); rdb(1)
            for n in range(nst):
                self.wait_vm(f"a{n}")
                if n < nL[p]: self.wait_lg(f"b{n}")
                for nb in range(2):
                    w = BF + 8 * (n & 1) + 4 * nb if n < nL[p] else BR + 8 * (n - nL[p]) + 4 * nb
                    c = "0" if (n == 0 and p != 0) else vr(ACC + 16 * nb, 16)
                    a(f"v_mfma_f32_32x32x16_bf16 {vr(ACC+16*nb,16)}, {vr(w,4)}, {vr(AF+4*(n%16),4)}, {c}")
                if n + 2 < nL[p]: rdb(n + 2)
                if n + 16 < nst: lda(n + 16)
                if n == nL[p] - 1: a("s_barrier")
            self.stamp(7)
            a(f"s_lshl_b32 s70, s{sMH}, 15\nv_add_u32 v8, s70, v2")
            for d in range(4):
                if d == p: continue
                for j in range(2):
                    a(f"ds_write_b128 v8, {vr(ACC+8*d+4*j,4)} offset:{(d*4+p)*2048+1024*j}")
            self.wait_all(vm=False); a("s_barrier")
            R = {}
            k = 0
            for src in range(4):
                if src == p: R[src] = ACC + 8 * p; continue
                R[src] = 32 + 8 * k; k += 1
                for j in range(2):
                    a(f"ds_read_b128 {vr(R[src]+4*j,4)}, v8 offset:{(p*4+src)*2048+1024*j}")
            X = 64
            for j in range(4):
                a(f"v_lshlrev_b32 v{X+2*j}, 16, v{12+j}\nv_and_b32 v{X+2*j+1}, 0xffff0000, v{12+j}")
            self.wait_all(vm=False)
            T, U = 72, 80
            for k in range(8): a(f"v_add_f32 v{T+k}, v{R[0]+k}, v{R[1]+k}")
            for k in range(8): a(f"v_add_f32 v{T+k}, v{T+k}, v{R[2]+k}")
            for k in range(8): a(f"v_mul_f32 v{U+k}, {hx(-LOG2E)}, v{T+k}")
            for k in range(8): a(f"v_exp_f32 v{U+k}, v{U+k}")
            for k in range(8): a(f"v_mul_f32 v{T+k}, v{T+k}, v{R[3]+k}")
            for k in range(8): a(f"v_add_f32 v{U+k}, 1.0, v{U+k}")
            for k in range(8): a(f"v_rcp_f32 v{U+k}, v{U+k}")
            for k in range(8): a(f"v_fmac_f32 v{X+k}, v{T+k}, v{U+k}")
            for k in range(4): a(f"v_cvt_pk_bf16_f32 v{88+k}, v{X+2*k}, v{X+2*k+1}")
            for j in range(2):
                a(f"buffer_store_dwordx2 {vr(88+2*j,2)}, v3, {srd(sOUT)}, 0 offen offset:{32*p+16*j}")
            a(f"s_branch {end}")

    def poll(self, p):
        pass

    def write_stamps(self):
        if not self.stamps: return
        a = self.a
        self.stamp(8) if False else None
        a("s_waitcnt vmcnt(0)\ns_memrealtime s[100:101]\ns_waitcnt lgkmcnt(0)")
        a(f"s_lshl_b32 s70, s2, 3\ns_add_u32 s70, s70, s{sWAVE}\ns_lshl_b32 s70, s70, 6\nv_mov_b32 v40, s70")
        for k in range(8): a(f"v_mov_b32 v{32+k}, s{84+2*k}")
        a("v_mov_b32 v44, s100\nv_mov_b32 v45, 0\nv_mov_b32 v46, 0\nv_mov_b32 v47, 0")
        a("s_mov_b64 exec, 1")
        a(f"buffer_store_dwordx4 v[32:35], v40, {srd(sWS)}, 0 offen\nbuffer_store_dwordx4 v[36:39], v40, {srd(sWS)}, 0 offen offset:16\nbuffer_store_dwordx4 v[44:47], v40, {srd(sWS)}, 0 offen offset:32")

def kd(name, nv=256):
    return f""".p2align 6
.amdhsa_kernel {name}
  .amdhsa_next_free_vgpr {nv}
  .amdhsa_next_free_sgpr 102
  .amdhsa_accum_offset {nv}
  .amdhsa_group_segment_fixed_size 0
  .amdhsa_kernarg_size 88
  .amdhsa_user_sgpr_count 2
  .amdhsa_user_sgpr_kernarg_segment_ptr 1
  .amdhsa_system_sgpr_workgroup_id_x 1
.end_amdhsa_kernel
"""
def entry(name):
    return f".globl {name}\n.p2align 8\n.type {name},@function\n{name}:\n"

def build_list(stamps=False):
    g1 = Gen(False, False); g1.prologue("L_END1"); g1.phase1(); g1.a("L_END1:\ns_endpgm")
    g2 = Gen(False, False); g2.prologue("L_END2"); g2.phase2("L_END2"); g2.a("L_END2:\ns_endpgm")
    n = g1.a.fix_hazards() + g2.a.fix_hazards()
    print("nops inserted:", n)
    s = "; @launch kernel=p1_kernel grid=(256,1,1) block=(512,1,1) lds=163840\n; @launch kernel=p2_kernel grid=(256,1,1) block=(512,1,1) lds=163840\n"
    s += '.amdgcn_target "amdgcn-amd-amdhsa--gfx950"\n.text\n'
    s += entry("p1_kernel") + g1.a.text() + entry("p2_kernel") + g2.a.text()
    s += '.section .rodata,"a"\n' + kd("p1_kernel") + kd("p2_kernel")
    return s

if __name__ == "__main__":
    mode = sys.argv[1]; out = sys.argv[2]
    if mode == "list": open(out, "w").write(build_list())
```

```python
import sys, struct, math
sys.path.insert(0, "gen")
from asmlib import Asm

BASE = "recurrent_scan__sliding_local_dilated__mixer_channel_mlp__prompt"
f2u = lambda x: struct.unpack("<I", struct.pack("<f", x))[0]
hx = lambda x: "0x%08x" % f2u(x)

A_BASE = 0x100000
FLAG_BASE = 0x40000
LOG2E = 1.4426950408889634
NEG = -1.0e30
SLOT = 8192

sX, sWA, sWS, sDBG, sW2, sWO, sOUT = 28, 32, 36, 40, 44, 48, 52
sB1P, sB2P = 56, 58
sWAVE, sG, sNT, sTYPE, sM2, sN2B, sW1K = 60, 61, 62, 63, 64, 65, 66
sONES, sC2 = 67, 68
vB = 31
srd = lambda b: f"s[{b}:{b+3}]"
vr = lambda b, n: f"v[{b}:{b+n-1}]" if n > 1 else f"v{b}"

P_FIRST = [0, 40, 76, 112]; P_NL = [24, 20, 20, 16]
def b1_src(p, c): return (sWO, 224 + 56 * c) if p == 3 else (sW2, 16 * (P_FIRST[p] + P_NL[p]) + 64 * c)
def b2_src(p, c): return (sWO, 56 * c) if p == 3 else (sW2, 16 * P_FIRST[p] + 64 * c)
def b1_slot(p, c): return 12 + 2 * p + c if c < 2 else 4 + 2 * p + (c - 2)
B2_SLOT = {}
for _p in range(4):
    B2_SLOT[(_p, 0)] = _p; B2_SLOT[(_p, 1)] = 12 + 2 * _p; B2_SLOT[(_p, 2)] = 13 + 2 * _p; B2_SLOT[(_p, 3)] = 4 + _p
B2_SLOT[(0, 4)] = 8; B2_SLOT[(1, 4)] = 9; B2_SLOT[(2, 4)] = 10; B2_SLOT[(0, 5)] = 11
B1_BY_SLOT = {b1_slot(p, c): (p, c) for p in range(4) for c in range(4)}
B2_BY_SLOT = {v: k for k, v in B2_SLOT.items()}

class Gen:
    def __init__(self, stamps=None, opt=None):
        self.a = Asm(); self.stamps = stamps; self.opt = opt or {}
        self.vm = []; self.lg = []
    def vmop(self, text, tag): self.a(text); self.vm.append(tag)
    def lgop(self, text, tag): self.a(text); self.lg.append(tag)
    def _idx(self, lst, tags): return max([i for i, t in enumerate(lst) if t in tags], default=-1)
    def wait_vm(self, *tags):
        idx = self._idx(self.vm, tags)
        if idx < 0: return
        n = len(self.vm) - 1 - idx
        self.a(f"s_waitcnt vmcnt({min(n,63)})"); self.vm = self.vm[idx + 1:]
    def wait_lg(self, *tags):
        idx = self._idx(self.lg, tags)
        if idx < 0: return
        n = len(self.lg) - 1 - idx
        self.a(f"s_waitcnt lgkmcnt({min(n,15)})"); self.lg = self.lg[idx + 1:]
    def wait_all(self, vm=True, lg=True):
        self.a("s_waitcnt " + " ".join(x for x, y in (("vmcnt(0)", vm), ("lgkmcnt(0)", lg)) if y))
        if vm: self.vm = []
        if lg: self.lg = []
    def stamp(self, name):
        if self.stamps and name in self.stamps:
            k = self.stamps.index(name)
            self.a(f"s_memrealtime s[{84+2*k}:{85+2*k}]")
    def mksrd(self, d, b, n):
        self.a(f"s_mov_b32 s{d}, s{b}\ns_mov_b32 s{d+1}, s{b+1}\ns_mov_b32 s{d+2}, {n}\ns_mov_b32 s{d+3}, 0x20000")
    def bar(self): self.a("s_barrier")

    def prologue(self):
        a = self.a
        a("s_cmp_ge_u32 s2, 256\ns_cbranch_scc1 L_END")
        self.stamp("start")
        a("s_load_dwordx16 s[4:19], s[0:1], 0\ns_load_dwordx4 s[20:23], s[0:1], 64\ns_load_dwordx2 s[24:25], s[0:1], 80")
        a("v_and_b32 v1, 63, v0\nv_lshrrev_b32 v12, 6, v0\nv_lshlrev_b32 v2, 4, v1")
        a(f"v_readfirstlane_b32 s{sWAVE}, v12")
        a("s_and_b32 s70, s2, 7\ns_lshr_b32 s71, s2, 3")
        a(f"s_and_b32 s{sG}, s70, 1\ns_lshl_b32 s{sG}, s{sG}, 3\ns_lshr_b32 s72, s71, 2\ns_add_u32 s{sG}, s{sG}, s72")
        a(f"s_and_b32 s{sNT}, s70, 6\ns_and_b32 s73, s71, 1\ns_add_u32 s{sNT}, s{sNT}, s73")
        a(f"s_bfe_u32 s{sTYPE}, s71, 0x10001")
        a(f"s_lshl_b32 s{sM2}, s70, 2\ns_and_b32 s73, s71, 3\ns_add_u32 s{sM2}, s{sM2}, s73\ns_lshl_b32 s{sN2B}, s72, 7")
        a(f"s_mov_b32 s{sONES}, 0x3f803f80\ns_lshl_b32 s{sW1K}, s{sWAVE}, 10")
        a(f"v_lshrrev_b32 v3, 3, v0\ns_lshl_b32 s70, s{sWAVE}, 3\nv_add_u32 v3, s70, v3\nv_mul_u32_u24 v3, 896, v3")
        a("v_and_b32 v12, 7, v0\nv_lshl_add_u32 v3, v12, 4, v3")
        a(f"s_mul_i32 s70, s{sG}, {128*896}\ns_add_u32 s71, s70, {8*896}")
        a("s_waitcnt lgkmcnt(0)")
        self.stamp("karg")
        self.mksrd(sX, 4, 2048 * 896)
        for grp in range(2):
            for j in range(7):
                self.vmop(f"buffer_load_dwordx4 {vr(32+(grp*7+j)*4,4)}, v3, {srd(sX)}, s{70+grp} offen offset:{128*j}", f"x{grp}{j}")
        self.stamp("xiss")
        self.mksrd(sWS, 24, 1 << 28); self.mksrd(sDBG, 22, 256); self.mksrd(sW2, 16, 1792 * 896); self.mksrd(sWO, 8, 448 * 896); self.mksrd(sOUT, 20, 2048 * 896)
        a(f"s_mov_b64 s[{sB1P}:{sB1P+1}], s[14:15]\ns_mov_b64 s[{sB2P}:{sB2P+1}], s[18:19]")
        a(f"v_lshrrev_b32 v12, 3, v0\nv_mul_u32_u24 v{vB}, 896, v12\nv_lshrrev_b32 v13, 2, v1\nv_and_b32 v13, 4, v13\nv_and_b32 v12, 7, v1\nv_xor_b32 v12, v12, v13\nv_lshl_add_u32 v{vB}, v12, 4, v{vB}")

    def f_dma(self, voff, srdb, sbase, add, lds, tag):
        def f():
            self.a(f"s_add_u32 m0, s{sW1K}, {lds}\ns_add_u32 s74, {sbase}, {add}")
            self.vmop(f"buffer_load_dwordx4 v{voff}, {srd(srdb)}, s74 offen lds", tag)
        return f
    def f_b(self, which, slot, tag):
        p, c = (B1_BY_SLOT if which == 1 else B2_BY_SLOT)[slot]
        sr, row = (b1_src if which == 1 else b2_src)(p, c)
        return self.f_dma(vB, sr, f"s{sN2B}", row * 896, slot * SLOT, tag)

    def dma_voff(self, stride):
        a = self.a
        a(f"v_lshrrev_b32 v12, 3, v0\nv_mul_u32_u24 v4, {stride}, v12")
        a(f"v_lshrrev_b32 v13, 2, v1\nv_and_b32 v13, 4, v13\ns_and_b32 s70, s{sWAVE}, 1\ns_lshl_b32 s70, s70, 1\nv_or_b32 v13, s70, v13")
        a("v_and_b32 v12, 7, v1\nv_xor_b32 v12, v12, v13\nv_lshl_add_u32 v4, v12, 4, v4")

    def reduce_dpp(self, regs, wide):
        a = self.a
        steps = ["quad_perm:[1,0,3,2]", "quad_perm:[2,3,0,1]", "row_half_mirror"] + (["row_mirror"] if wide else [])
        for st in steps:
            for r in regs: a(f"v_add_f32_dpp v{r}, v{r}, v{r} {st} row_mask:0xf bank_mask:0xf")
        if wide:
            for r in regs: a(f"v_mov_b32 v{r+4}, v{r}")
            for r in regs: a(f"v_permlane16_swap_b32 v{r}, v{r+4}")
            for r in regs: a(f"v_add_f32 v{r}, v{r}, v{r+4}")

    def ln_scale(self, s1, s2, second):
        a = self.a; t = s2 + 1
        a(f"v_mul_f32 v{s1}, {hx(1/448)}, v{s1}\nv_mul_f32 v{s2}, {hx(1/448)}, v{s2}")
        a(f"v_fma_f32 v{s2}, -v{s1}, v{s1}, v{s2}\nv_max_f32 v{s2}, 0, v{s2}")
        a(f"v_add_f32 v{t}, {hx(1e-5)}, v{s2}\nv_rsq_f32 v{t}, v{t}")
        if second:
            a(f"v_mul_f32 v{s2}, v{s2}, v{t}\nv_mul_f32 v{s2}, v{s2}, v{t}\nv_add_f32 v{s2}, {hx(1e-5)}, v{s2}\nv_rsq_f32 v{s2}, v{s2}")
            a(f"v_mul_f32 v{t}, v{t}, v{s2}")
        a(f"v_cvt_pk_bf16_f32 v{t}, v{t}, 0\nv_lshlrev_b32 v{s2}, 16, v{t}")
        a(f"v_mul_f32 v{t+1}, v{s1}, v{s2}\nv_mov_b32 v{s1}, v{t}\nv_sub_f32 v{t}, 0, v{t+1}")

    def stats(self, base, n, s1, s2, tags):
        a = self.a
        a(f"v_mov_b32 v{s1}, 0\nv_mov_b32 v{s2}, 0")
        for j in range(n):
            self.wait_vm(tags[j])
            for k in range(4):
                r = base + 4 * j + k
                a(f"v_dot2c_f32_bf16 v{s1}, s{sONES}, v{r}\nv_dot2c_f32_bf16 v{s2}, v{r}, v{r}")

    def normalize(self, base, clo, chi, nm, tmp):
        a = self.a
        for k in range(4):
            a(f"v_dot2_f32_bf16 v{tmp+2*k}, v{base+k}, v{clo}, v{nm}\nv_dot2_f32_bf16 v{tmp+2*k+1}, v{base+k}, v{chi}, v{nm}")
        for k in range(4):
            a(f"v_cvt_pk_bf16_f32 v{base+k}, v{tmp+2*k}, v{tmp+2*k+1}")

    def ln_main(self, second, scratch, fillers):
        a = self.a; fillers = list(fillers)
        a(f"v_lshrrev_b32 v12, 3, v1\ns_lshl_b32 s70, s{sWAVE}, 4\nv_add_u32 v12, s70, v12\nv_mul_u32_u24 v12, 896, v12")
        if scratch: a(f"v_add_u32 v12, {scratch}, v12")
        a("v_lshrrev_b32 v13, 4, v1\nv_and_b32 v14, 7, v1\nv_xor_b32 v13, v13, v14")
        a(f"v_lshl_add_u32 v6, v13, 4, v12\nv_xor_b32 v13, 4, v13\nv_lshl_add_u32 v7, v13, 4, v12\nv_add_u32 v7, {8*896}, v7")
        S = [(104, 105), (112, 113)]
        for grp in range(2):
            s1, s2 = S[grp]
            self.stats(32 + grp * 28, 7, s1, s2, [f"x{grp}{j}" for j in range(7)])
            self.stamp(f"st{grp}")
            self.reduce_dpp([s1, s2], False)
            self.ln_scale(s1, s2, second)
            for j in range(7):
                if fillers: fillers.pop(0)()
                b = 32 + (grp * 7 + j) * 4
                self.normalize(b, s1, s2, s2 + 1, 96)
                a(f"ds_write_b128 v{6+grp}, {vr(b,4)} offset:{128*j}")
        for f in fillers: f()
        self.stamp("lnend")

    def unpack_bias(self, sb, acc):
        a = self.a
        for hh in range(2):
            if hh: a("s_mov_b64 exec, s[82:83]")
            for j in range(4):
                for k in range(2):
                    s = sb + 4 * j + 2 * hh + k
                    a(f"v_lshlrev_b32 v{acc+4*j+2*k}, 16, s{s}\nv_and_b32 v{acc+4*j+2*k+1}, s{s}, v29")
        a("s_mov_b64 exec, -1")

    def pipeline(self, n, depth, rd, mm, events, fillers):
        nxt = 0; hold = False
        while nxt < min(depth, n): rd(nxt); nxt += 1
        for i in range(n):
            while nxt <= i: rd(nxt); nxt += 1
            mm(i)
            for e in events.get(i, []):
                if e == "hold": hold = True
                elif e == "go": hold = False
                else: e()
            while not hold and nxt < min(i + 1 + depth, n): rd(nxt); nxt += 1
            for f in fillers.get(i, []): f()

    @staticmethod
    def spread(fillers, items, lo, hi):
        n = hi - lo
        for k, it in enumerate(items):
            fillers.setdefault(lo + k * n // len(items), []).append(it)

    def gelu_items(self, acc, sbase, add):
        a = self.a; T = 232; L = []
        I = lambda s: L.append(lambda s=s: a(s))
        for h in range(2):
            x = acc + 8 * h
            for k in range(8): I(f"v_mul_f32 v{T+k}, v{x+k}, v{x+k}")
            for k in range(8): I(f"v_fma_f32 v{T+k}, v{T+k}, s{sC2}, v27")
            for k in range(8): I(f"v_mul_f32 v{T+k}, v{T+k}, v{x+k}")
            for k in range(8): I(f"v_exp_f32 v{T+k}, v{T+k}")
            for k in range(8): I(f"v_add_f32 v{T+k}, 1.0, v{T+k}")
            for k in range(8): I(f"v_rcp_f32 v{T+k}, v{T+k}")
            for k in range(8): I(f"v_mul_f32 v{T+k}, v{x+k}, v{T+k}")
            P = 240 + 4 * h
            for k in range(4): I(f"v_cvt_pk_bf16_f32 v{P+k}, v{T+2*k}, v{T+2*k+1}")
            def st(P=P, h=h):
                a(f"s_add_u32 s75, {sbase}, {add*32+1024*h}")
                self.vmop(f"buffer_store_dwordx4 {vr(P,4)}, v2, {srd(sWS)}, s75 offen sc1", "st")
            L.append(st)
        return L

    def type_h(self, grpB):
        a = self.a; L = "HB" if grpB else "HA"
        R0, R1, R2 = 0, 57344, 114688
        EARLY = R2 + 28672
        RS = 64 * 3584
        self.vm = list(self.vm0); self.lg = []
        a(f"L_{L}:")
        self.mksrd(sWA, 12, 448 * 3584)
        a(f"s_lshr_b32 s70, s{sNT}, 1\ns_mul_i32 s70, s70, 896\ns_and_b32 s71, s{sNT}, 1\ns_lshl_b32 s76, s71, 9\ns_add_u32 s76, s76, s70")
        a("s_lshl_b32 s77, s71, 6\ns_add_u32 s77, s77, s70\ns_add_u32 s77, s77, 384")
        if grpB: blocks = [("s76", 0), ("s76", 128), ("s76", 256)]
        else: blocks = [("s77", 0), ("s76", 64), ("s76", 192), ("s76", 320)]
        def sload(b, dst):
            sb, off = blocks[b]
            a(f"s_add_u32 s70, {sb}, {off}\ns_load_dwordx16 s[{dst}:{dst+15}], s[{sB1P}:{sB1P+1}], s70")
        sload(0, 4)
        if grpB:
            a(f"s_lshl_b32 s78, s{sNT}, 3\ns_add_u32 s78, s78, s{sWAVE}\ns_cmp_lg_u32 s78, 7\ns_cbranch_scc1 L_nolead1")
            a(f"s_lshl_b32 s70, s{sG}, 12\ns_add_u32 s70, s70, {FLAG_BASE}\nv_lshlrev_b32 v12, 2, v1\nv_mov_b32 v13, 0\ns_mov_b64 exec, 0xffff")
            a(f"buffer_store_dword v13, v12, {srd(sWS)}, s70 offen sc1\ns_mov_b64 exec, -1\nL_nolead1:")
        self.dma_voff(3584)
        a(f"v_lshrrev_b32 v12, 2, v0\nv_mul_u32_u24 v5, 3584, v12\nv_and_b32 v12, 3, v1\nv_lshl_add_u32 v5, v12, 4, v5")
        c1 = -2.0 * math.sqrt(2.0 / math.pi) * LOG2E
        a(f"v_mov_b32 v27, {hx(c1)}\ns_mov_b32 s{sC2}, {hx(c1*0.044715)}\nv_mov_b32 v29, 0xffff0000\ns_mov_b32 s82, 0\ns_mov_b32 s83, -1")
        a(f"v_and_b32 v12, 31, v1\ns_and_b32 s70, s{sWAVE}, 3\ns_lshl_b32 s70, s70, 5\nv_add_u32 v13, s70, v12\nv_mul_u32_u24 v13, 896, v13")
        a("v_bfe_u32 v12, v1, 1, 3\nv_lshrrev_b32 v14, 5, v1\nv_xor_b32 v12, v12, v14")
        for i in range(4):
            a(f"v_xor_b32 v14, {2*i}, v12\nv_lshl_add_u32 v{8+i}, v14, 4, v13")
        a("v_lshrrev_b32 v12, 5, v1\nv_bfe_u32 v13, v1, 2, 2\nv_lshl_add_u32 v14, v12, 3, v13")
        a("v_bfe_u32 v15, v1, 4, 1\nv_lshlrev_b32 v15, 1, v15\nv_bfe_u32 v16, v1, 1, 1\nv_or_b32 v15, v15, v16")
        a("v_lshrrev_b32 v16, 1, v13\nv_lshlrev_b32 v16, 2, v16\nv_lshl_or_b32 v16, v12, 1, v16")
        a(f"v_xor_b32 v16, v15, v16\nv_xor_b32 v16, {0 if grpB else 4}, v16\nv_lshlrev_b32 v16, 4, v16")
        a("v_and_b32 v17, 1, v1\nv_lshl_or_b32 v16, v17, 3, v16\nv_lshl_add_u32 v24, v14, 7, v16")
        a(f"v_add_u32 v25, {R1}, v24\nv_add_u32 v28, {EARLY}, v24")
        a(f"v_lshlrev_b32 v15, 4, v15\nv_lshl_or_b32 v15, v17, 3, v15\nv_lshl_add_u32 v26, v14, 6, v15\nv_add_u32 v26, {R2}, v26")
        a(f"s_and_b32 s70, s{sWAVE}, 3\ns_lshl_b32 s71, s{sG}, 2\ns_add_u32 s71, s71, s70\ns_mul_i32 s71, s71, {144*1024}\ns_add_u32 s71, s71, {A_BASE}")
        a("s_lshl_b32 s79, s76, 5\ns_add_u32 s79, s79, s71\ns_lshl_b32 s80, s77, 5\ns_add_u32 s80, s80, s71")
        for b in range(len(blocks)):
            a("s_waitcnt lgkmcnt(0)")
            self.unpack_bias(4, 144 + 16 * b)
            if b + 1 < len(blocks): sload(b + 1, 4)
        self.stamp("setup")
        fl = [self.f_dma(5, sWA, "s77", t * 128 * 3584, R2 + t * SLOT, "S") for t in range(3 if grpB else 4)]
        fl += [self.f_dma(4, sWA, "s76", t * RS, EARLY + t * SLOT, "E") for t in range(2 if grpB else 3)]
        if grpB:
            def cert():
                a("s_cmp_lg_u32 s78, 7\ns_cbranch_scc1 L_nolead2")
                a(f"s_lshl_b32 s70, s{sG}, 2\nv_mov_b32 v12, s70\nv_mov_b32 v13, 1\ns_mov_b64 exec, 1")
                a(f"buffer_store_dword v13, v12, {srd(sDBG)}, 0 offen sc1\ns_mov_b64 exec, -1\nL_nolead2:")
        self.ln_main(True, 0, fl)
        self.wait_all();
        if grpB: cert()
        self.bar()
        self.stamp("x1")
        WF = lambda i: 208 + 4 * (i % 6)
        adS = lambda s, q: (26, 1024 * s + 256 * q)
        ad0 = lambda s, q: (28 if s < 10 else 24, 2048 * s + 512 * q)
        ad1 = lambda s, q: (25, 2048 * s + 512 * q)
        ad2 = lambda s, q: (24, 2048 * s + 512 * q)
        seq = [ad0, ad1, ad2] if grpB else [adS, ad0, ad1, ad2]
        n = 28 * len(seq)
        def xr(s): self.lgop(f"ds_read_b128 {vr(32+4*s,4)}, v{8+(s&3)} offset:{128*(s>>2)}", f"xf{s}")
        def rd(i):
            b, s = divmod(i, 28)
            if i < 4: xr(i)
            for q in range(2):
                vb, imm = seq[b](s, q)
                self.lgop(f"ds_read_b64_tr_b16 {vr(WF(i)+2*q,2)}, v{vb} offset:{imm}", f"w{i}")
        def mm(i):
            b, s = divmod(i, 28); acc = 144 + 16 * b
            self.wait_lg(f"w{i}", f"xf{i}")
            a(f"v_mfma_f32_32x32x16_bf16 {vr(acc,16)}, {vr(WF(i),4)}, {vr(32+4*s,4)}, {vr(acc,16)}")
        ev = {}; fi = {}
        E = lambda i, *x: ev.setdefault(i, []).extend(x)
        wv = lambda t: (lambda: self.wait_vm(t))
        st = lambda nm: (lambda: self.stamp(nm))
        for i in range(8): fi[i] = [lambda s=s: xr(s) for s in range(4 + 3 * i, 7 + 3 * i)]
        dL = [self.f_dma(4, sWA, "s76", t * RS, R0 + t * SLOT, "L") for t in ([2] if grpB else []) + [3, 4, 5, 6]]
        d1 = [self.f_dma(4, sWA, "s76", 128 + t * RS, R1 + t * SLOT, "D1") for t in range(7)]
        d2 = [self.f_dma(4, sWA, "s76", 256 + t * RS, R0 + t * SLOT, "D2") for t in range(7)]
        bE1 = [self.f_b(1, s, "BE") for s in range(14, 20)]
        bE2 = [self.f_b(1, s, "BE") for s in (12, 13, 7, 8, 9, 10, 11)]
        x2 = lambda: self.wait_lg("xf27")
        if not grpB:
            E(9, x2, self.bar, st("m0"), *dL)
            self.spread(fi, d1, 10, 24)
            E(33, wv("L"), self.bar, st("m1"))
            E(48, wv("D1"), self.bar, st("m2"))
            E(57, self.bar, st("m3")); self.spread(fi, d2 + bE1, 57, 76)
            E(76, wv("D2"), self.bar, st("m4"))
            E(85, self.bar, st("m5")); self.spread(fi, bE2, 85, 106)
            outs = [("s80", 0), ("s79", 64), ("s79", 192), ("s79", 320)]
        else:
            E(6, "hold")
            E(9, x2, self.bar, st("m0"), *dL, *d1, wv("L"), self.bar, st("m1"), "go")
            E(23, wv("D1"), self.bar, st("m2"))
            E(32, self.bar, st("m3")); self.spread(fi, d2 + bE1, 32, 51)
            E(51, wv("D2"), self.bar, st("m4"))
            E(60, self.bar, st("m5")); self.spread(fi, bE2, 60, 81)
            outs = [("s79", 0), ("s79", 128), ("s79", 256)]
        for b in range(len(seq) - 1):
            self.spread(fi, self.gelu_items(144 + 16 * b, *outs[b]), 28 * (b + 1) + 1, 28 * (b + 2))
        self.pipeline(n, 4, rd, mm, ev, fi)
        self.stamp("m6")
        for f in self.gelu_items(144 + 16 * (len(seq) - 1), *outs[-1]): f()
        self.finish1([4, 5, 6])

    def type_q(self):
        a = self.a
        SC, WV, XB, HALO = 34816, 90112, 57344, 34816 + 128 * 896
        RS = 64 * 2688
        KP, VP, QP = 164, 176, 188
        MC, MP, MP0, PM = 196, 200, 204, 244
        self.vm = list(self.vm0); self.lg = []
        a("L_Q:")
        a(f"s_lshl_b32 s70, s{sG}, 7\ns_lshl_b32 s71, s{sWAVE}, 1\ns_add_u32 s70, s70, s71\ns_sub_u32 s70, s70, 16\ns_mul_i32 s70, s70, 896")
        a("v_lshrrev_b32 v12, 5, v1\nv_mul_u32_u24 v12, 896, v12\nv_and_b32 v13, 31, v1\nv_lshl_add_u32 v5, v13, 4, v12\nv_add_u32 v5, s70, v5")
        a("v_mov_b32 v14, 0x80000000\nv_cmp_gt_u32 vcc, 28, v13\nv_cndmask_b32 v5, v14, v5, vcc")
        for jj in range(2):
            self.vmop(f"buffer_load_dwordx4 {vr(88+4*jj,4)}, v5, {srd(sX)}, 0 offen offset:{448*jj}", f"hx{jj}")
        self.mksrd(sWA, 6, 448 * 2688)
        self.dma_voff(2688)
        a(f"s_mul_i32 s76, s{sNT}, 112")
        a(f"s_and_b32 s70, s{sWAVE}, 3\ns_mul_i32 s70, s70, {32*896}\ns_add_u32 s70, s70, {SC}")
        a("v_and_b32 v12, 15, v1\nv_mul_u32_u24 v13, 896, v12\nv_bfe_u32 v12, v1, 1, 3\nv_lshrrev_b32 v14, 4, v1\nv_xor_b32 v12, v12, v14")
        a("v_lshl_add_u32 v10, v12, 4, v13\nv_xor_b32 v12, 4, v12\nv_lshl_add_u32 v11, v12, 4, v13")
        a(f"v_add_u32 v8, s70, v10\nv_add_u32 v9, s70, v11\nv_add_u32 v10, {HALO}, v10\nv_add_u32 v11, {HALO}, v11")
        a(f"s_lshr_b32 s70, s{sWAVE}, 2\ns_mul_i32 s70, s70, 56")
        a("v_lshrrev_b32 v12, 4, v1\nv_bfe_u32 v13, v1, 2, 2\nv_lshl_add_u32 v14, v12, 3, v13\nv_lshlrev_b32 v14, 7, v14")
        a("v_lshrrev_b32 v13, 1, v13\nv_lshlrev_b32 v13, 6, v13\nv_and_b32 v12, 1, v12\nv_lshl_or_b32 v13, v12, 5, v13")
        a("v_and_b32 v12, 3, v1\nv_lshlrev_b32 v12, 3, v12\nv_add_u32 v12, s70, v12")
        a("v_xor_b32 v15, v12, v13\nv_add_u32 v24, v14, v15\nv_add_u32 v12, 32, v12\nv_xor_b32 v15, v12, v13\nv_add_u32 v25, v14, v15")
        a(f"v_add_u32 v26, {WV}, v24\nv_add_u32 v27, {WV}, v25")
        a(f"v_lshrrev_b32 v12, 5, v1\ns_lshl_b32 s70, s{sWAVE}, 1\nv_add_u32 v12, s70, v12\nv_bfe_u32 v13, v12, 1, 3\nv_mul_u32_u24 v12, 896, v12\nv_add_u32 v12, {HALO}, v12")
        a("v_and_b32 v14, 31, v1\nv_xor_b32 v15, v14, v13\nv_lshl_add_u32 v16, v15, 4, v12\nv_add_u32 v14, 28, v14\nv_xor_b32 v15, v14, v13\nv_lshl_add_u32 v17, v15, 4, v12")
        a(f"s_lshr_b32 s70, s{sWAVE}, 2\ns_mul_i32 s70, s70, 10240\ns_add_u32 s70, s70, {XB}\nv_add_u32 v18, s70, v2")
        a(f"s_and_b32 s71, s{sWAVE}, 3\ns_lshl_b32 s71, s71, 11\nv_add_u32 v28, s71, v18\nv_add_u32 v30, 2048, v28")
        a("v_and_b32 v12, 15, v1\nv_lshrrev_b32 v13, 4, v1\nv_lshlrev_b32 v13, 2, v13\nv_sub_u32 v12, v12, v13")
        a(f"v_mov_b32 v14, {hx(NEG)}\nv_mov_b32 v15, 0")
        a(f"s_and_b32 s70, s{sWAVE}, 3\ns_or_b32 s70, s70, s{sG}\ns_cmp_eq_u32 s70, 0\ns_cselect_b32 s78, {hx(NEG)}, 0")
        for r in range(4):
            a(f"v_subrev_u32 v13, {r}, v12\nv_and_b32 v19, 0x80000001, v13")
            a(f"v_cmp_eq_u32 vcc, 0, v19\nv_mov_b32 v20, {'0xffff0000' if r&1 else '0x0000ffff'}\ns_nop 0\nv_cndmask_b32 v{MC+r}, v14, v15, vcc\nv_cndmask_b32 v{21+(r&1)}, v15, v20, vcc")
            a(f"v_cmp_eq_u32 vcc, 0x80000000, v19")
            if r & 1: a(f"v_or_b32 v{PM+2+(r>>1)}, v21, v22")
            a(f"v_cndmask_b32 v{MP+r}, v14, v15, vcc\nv_cndmask_b32 v{252+(r&1)}, v15, v20, vcc")
            if r & 1: a(f"v_or_b32 v{PM+(r>>1)}, v252, v253")
            a(f"v_min_f32 v{MP0+r}, s78, v{MP+r}")
        qs = 28 ** -0.5 * LOG2E
        a(f"v_cmp_gt_u32 vcc, 48, v1\nv_mov_b32 v19, {hx(qs)}\ns_nop 0\nv_cndmask_b32 v20, v15, v19, vcc\nv_cndmask_b32 v21, 0, -1, vcc")
        a("v_lshrrev_b32 v12, 4, v1\nv_and_b32 v13, 15, v1\nv_lshlrev_b32 v13, 4, v13\nv_lshl_add_u32 v22, v12, 9, v13")
        a(f"s_and_b32 s70, s{sWAVE}, 3\ns_lshl_b32 s79, s{sG}, 2\ns_add_u32 s79, s79, s70\ns_mul_i32 s79, s79, 144\ns_lshr_b32 s70, s{sWAVE}, 2\ns_lshl_b32 s71, s{sNT}, 1\ns_add_u32 s70, s70, s71\ns_lshl_b32 s70, s70, 1")
        a(f"s_add_u32 s79, s79, s70\ns_add_u32 s79, s79, 112\ns_lshl_b32 s79, s79, 10\ns_add_u32 s79, s79, {A_BASE}")
        self.stamp("setup")
        self.ln_main(False, SC, [self.f_dma(4, sWA, "s76", 896 + t * RS, t * SLOT, "E") for t in range(4)])
        self.stats(88, 2, 104, 105, ["hx0", "hx1"])
        self.reduce_dpp([104, 105], True)
        self.ln_scale(104, 105, False)
        a("s_mov_b32 s70, 0x0fffffff\ns_mov_b32 s71, 0x0fffffff")
        for jj in range(2): self.normalize(88 + 4 * jj, 104, 105, 106, 96)
        a("s_mov_b64 exec, s[70:71]")
        for jj in range(2): a(f"ds_write_b128 v{16+jj}, {vr(88+4*jj,4)}")
        a("s_mov_b64 exec, -1")
        self.wait_all(); self.bar()
        self.stamp("x1")
        a(f"s_and_b32 s70, s{sWAVE}, 3\ns_cmp_eq_u32 s70, 1\ns_cbranch_scc1 L_Q1\ns_cmp_eq_u32 s70, 2\ns_cbranch_scc1 L_Q2\ns_cmp_eq_u32 s70, 3\ns_cbranch_scc1 L_Q3")
        WF = lambda i, db: 208 + 8 * (i % 3) + 4 * db
        HF = lambda i: 232 + 4 * (i % 3)
        wv = lambda t: (lambda: self.wait_vm(t))
        st = lambda nm: (lambda: self.stamp(nm))
        def xr(tb, s): self.lgop(f"ds_read_b128 {vr(32+4*(14*tb+s),4)}, v{8+(s&1)} offset:{128*(s>>1)+14336*tb}", f"xf{s}")
        for qt in range(4):
            self.vm = []; self.lg = []
            a(f"L_Q{qt}:")
            halo = {0: (qt if qt < 2 else None), 1: (qt - 2 if qt >= 2 else None), 2: None}
            ACC = lambda rnd: 144 if rnd != 1 else 216 + 0
            accb = {0: 144, 1: 248, 2: 144}
            def rd(i):
                rnd, s = divmod(i, 14)
                if i < 2: xr(0, i); xr(1, i)
                b0 = 26 if rnd == 1 else 24
                for db in range(2):
                    for q in range(2):
                        self.lgop(f"ds_read_b64_tr_b16 {vr(WF(i,db)+2*q,2)}, v{b0+db} offset:{4096*s+512*q}", f"w{i}")
                if halo[rnd] is not None:
                    self.lgop(f"ds_read_b128 {vr(HF(i),4)}, v{10+(s&1)} offset:{128*(s>>1)}", f"w{i}")
            def mf(rnd, acc, w, x, first):
                aa, bb = (x, w) if rnd == 1 else (w, x)
                a(f"v_mfma_f32_16x16x32_bf16 {vr(acc,4)}, {vr(aa,4)}, {vr(bb,4)}, {'0' if first else vr(acc,4)}")
            def mm(i):
                rnd, s = divmod(i, 14)
                if s == 0 and rnd > 0: pack(rnd - 1)
                self.wait_lg(f"w{i}", f"xf{i}")
                for tb in range(2):
                    for db in range(2):
                        mf(rnd, 144 + 8 * tb + 4 * db, WF(i, db), 32 + 4 * (14 * tb + s), s == 0)
                if halo[rnd] is not None: mf(rnd, 160, WF(i, halo[rnd]), HF(i), s == 0)
            def pack(rnd):
                if rnd == 0:
                    for tb in range(2):
                        for k in range(4): a(f"v_cvt_pk_bf16_f32 v{KP+4*(tb+1)+k}, v{144+8*tb+2*k}, v{144+8*tb+2*k+1}")
                    self.lgop(f"ds_write_b128 v30, {vr(KP+8,4)}", "xw")
                else:
                    for tb in range(2):
                        for db in range(2):
                            for k in range(2):
                                r = 144 + 8 * tb + 4 * db + 2 * k
                                a(f"v_cvt_pk_bf16_f32 v{VP+6*db+2+2*tb+k}, v{r}, v{r+1}")
                    for db in range(2): self.lgop(f"ds_write_b64 v30, {vr(VP+6*db+4,2)} offset:{1024+8*db}", "xw")
                if halo[rnd] is not None:
                    a("v_cvt_pk_bf16_f32 v248, v160, v161\nv_cvt_pk_bf16_f32 v249, v162, v163")
                    self.lgop(f"ds_write_b64 v18, v[248:249] offset:{1024*rnd+8*halo[rnd]}", "xw")
            ev = {}; fi = {}
            E = lambda i, *x: ev.setdefault(i, []).extend(x)
            for i in range(4): fi[i] = [lambda tb=tb, s=s: xr(tb, s) for s in range(2 + 3 * i, 5 + 3 * i) for tb in range(2)]
            dL = [self.f_dma(4, sWA, "s76", 896 + t * RS, t * SLOT, "L") for t in (4, 5, 6)]
            dV = [self.f_dma(4, sWA, "s76", 1792 + t * RS, WV + t * SLOT, "V") for t in range(7)]
            dQ = [self.f_dma(4, sWA, "s76", t * RS, t * SLOT, "Q") for t in range(7)]
            bE = [self.f_b(1, s, "BE") for s in range(12, 20)]
            E(5, lambda: self.wait_lg("xf13"), self.bar, st("m0"), *dL)
            E(6, "hold")
            self.spread(fi, dV[:4], 5, 7)
            E(7, *dV[4:], wv("L"), self.bar, st("m1"), "go")
            E(11, wv("V"), self.bar, st("m2"))
            E(14, self.bar, st("m3")); self.spread(fi, dQ, 14, 21)
            E(25, wv("Q"), self.bar, st("m4"))
            def xread():
                self.lgop(f"ds_read_b128 {vr(KP,4)}, v28", "xk")
                for db in range(2): self.lgop(f"ds_read_b64 {vr(VP+6*db,2)}, v28 offset:{1024+8*db}", "xk")
            E(30, lambda: self.wait_lg("xw"), self.bar, st("m5"), xread); self.spread(fi, bE, 30, 42)
            self.pipeline(42, 2, rd, mm, ev, fi)
            if qt < 3: a("s_branch L_QC")
        a("L_QC:")
        self.stamp("m6")
        for tb in range(2):
            for db in range(2):
                for k in range(4):
                    r = 144 + 8 * tb + 4 * db + k
                    a(f"v_mul_f32 v{r}, v{19+db}, v{r}")
            for k in range(4): a(f"v_cvt_pk_bf16_f32 v{QP+4*tb+k}, v{144+8*tb+2*k}, v{144+8*tb+2*k+1}")
        a("s_waitcnt lgkmcnt(0)"); self.lg = []
        for tb in range(2):
            a(f"v_mfma_f32_16x16x32_bf16 {vr(144+8*tb,4)}, {vr(KP+4*tb,4)}, {vr(QP+4*tb,4)}, {vr(MP0 if tb==0 else MP,4)}")
            a(f"v_mfma_f32_16x16x32_bf16 {vr(148+8*tb,4)}, {vr(KP+4*tb+4,4)}, {vr(QP+4*tb,4)}, {vr(MC,4)}")
        E_ = 208
        both = lambda f: [a(f(tb, 144 + 8 * tb, E_ + 4 * tb)) for tb in range(2)]
        both(lambda tb, s, e: f"v_max3_f32 v{e}, v{s}, v{s+1}, v{s+4}")
        both(lambda tb, s, e: f"v_max3_f32 v{e+1}, v{s+2}, v{s+3}, v{s+6}")
        both(lambda tb, s, e: f"v_max_f32 v{e}, v{e}, v{s+5}")
        both(lambda tb, s, e: f"v_max_f32 v{e+1}, v{e+1}, v{s+7}")
        both(lambda tb, s, e: f"v_max_f32 v{e+2}, v{e}, v{e+1}")
        for sw in ("16", "32"):
            both(lambda tb, s, e: f"v_mov_b32 v{e+3}, v{e+2}")
            both(lambda tb, s, e: f"v_permlane{sw}_swap_b32 v{e+2}, v{e+3}")
            both(lambda tb, s, e: f"v_max_f32 v{e+2}, v{e+2}, v{e+3}")
        both(lambda tb, s, e: f"v_sub_f32 v{e}, v{e}, v{e+2}")
        both(lambda tb, s, e: f"v_sub_f32 v{e+1}, v{e+1}, v{e+2}")
        both(lambda tb, s, e: f"v_exp_f32 v{e}, v{e}")
        both(lambda tb, s, e: f"v_exp_f32 v{e+1}, v{e+1}")
        both(lambda tb, s, e: f"v_add_f32 v{e+2}, v{e}, v{e+1}")
        for sw in ("16", "32"):
            both(lambda tb, s, e: f"v_mov_b32 v{e+3}, v{e+2}")
            both(lambda tb, s, e: f"v_permlane{sw}_swap_b32 v{e+2}, v{e+3}")
            both(lambda tb, s, e: f"v_add_f32 v{e+2}, v{e+2}, v{e+3}")
        both(lambda tb, s, e: f"v_rcp_f32 v{e+2}, v{e+2}")
        both(lambda tb, s, e: f"v_mul_f32 v{e}, v{e}, v{e+2}")
        both(lambda tb, s, e: f"v_mul_f32 v{e+1}, v{e+1}, v{e+2}")
        both(lambda tb, s, e: f"v_cvt_pk_bf16_f32 v{e}, v{e}, v{e}")
        both(lambda tb, s, e: f"v_cvt_pk_bf16_f32 v{e+1}, v{e+1}, v{e+1}")
        P = 216
        for k in range(4): both(lambda tb, s, e: f"v_and_b32 v{P+4*tb+k}, v{PM+k}, v{e+(k&1)}")
        for tb in range(2):
            for db in range(2):
                a(f"v_mfma_f32_16x16x32_bf16 {vr(144+8*tb+4*db,4)}, {vr(VP+6*db+2*tb,4)}, {vr(P+4*tb,4)}, 0")
        for tb in range(2):
            O = 224 + 4 * tb
            for k in range(4): a(f"v_cvt_pk_bf16_f32 v{O+k}, v{144+8*tb+2*k}, v{144+8*tb+2*k+1}")
            a(f"v_and_b32 v{O+2}, v21, v{O+2}\nv_and_b32 v{O+3}, v21, v{O+3}")
            self.vmop(f"buffer_store_dwordx4 {vr(O,4)}, v22, {srd(sWS)}, s79 offen offset:{256*tb} sc1", "st")
        self.finish1(range(4, 12))

    def finish1(self, late):
        self.stamp("p1end")
        self.wait_vm("BE"); self.bar()
        self.stamp("z")
        for s in late: self.f_b(1, s, "BL")()
        for s in range(4): self.f_b(2, s, "B2")()
        self.a("s_branch L_P2")

    def phase2(self):
        a = self.a
        sMH, sAB = 76, 77
        a("L_P2:")
        a(f"s_and_b32 s{sMH}, s{sWAVE}, 1")
        a("v_lshrrev_b32 v12, 5, v1\nv_bfe_u32 v13, v1, 2, 2\nv_lshl_add_u32 v14, v12, 2, v13")
        a("v_bfe_u32 v15, v1, 4, 1\nv_lshlrev_b32 v15, 1, v15\nv_bfe_u32 v12, v1, 1, 1\nv_or_b32 v15, v15, v12")
        a("v_lshrrev_b32 v13, 1, v13\nv_lshlrev_b32 v13, 2, v13\nv_xor_b32 v15, v15, v13\nv_lshlrev_b32 v15, 4, v15")
        a("v_and_b32 v12, 1, v1\nv_lshl_or_b32 v15, v12, 3, v15\nv_lshl_add_u32 v5, v14, 7, v15\nv_xor_b32 v8, 64, v5")
        a("v_add_u32 v6, 0x10000, v5\nv_add_u32 v7, 0x20000, v5\nv_add_u32 v9, 0x10000, v8\nv_add_u32 v10, 0x20000, v8")
        a(f"s_lshl_b32 s70, s{sM2}, 1\ns_add_u32 s70, s70, s{sMH}\ns_mul_i32 s{sAB}, s70, {144*1024}\ns_add_u32 s{sAB}, s{sAB}, {A_BASE}")
        a(f"s_lshl_b32 s70, s70, 5\nv_and_b32 v12, 31, v1\nv_add_u32 v12, s70, v12\nv_mul_u32_u24 v3, 896, v12\nv_lshrrev_b32 v12, 5, v1\nv_lshlrev_b32 v12, 4, v12")
        a(f"v_add3_u32 v3, v3, v12, s{sN2B}")
        a(f"s_cmp_ge_u32 s{sWAVE}, 6\ns_cbranch_scc1 L_P2_2\ns_cmp_ge_u32 s{sWAVE}, 4\ns_cbranch_scc1 L_P2_3\ns_cmp_ge_u32 s{sWAVE}, 2\ns_cbranch_scc1 L_P2_1")
        ACC, BR, AF, BF = 96, 128, 32, 16
        for p in range(4):
            self.vm = ["st", "BL"] + ["B2"] * 4; self.lg = []
            a(f"L_P2_{p}:")
            def baddr(slot, sl, nb, q):
                loc = (sl * 2048 + q * 1024) if p < 3 else (28 * (sl >> 1) + 8 * (sl & 1) + 16 * q) * 128
                off = slot * SLOT + loc
                return 5 + 3 * nb + (off >> 16), off & 0xffff
            def b1regs(cs):
                for c in cs:
                    for sl in range(4):
                        for nb in range(2):
                            for q in range(2):
                                vb, imm = baddr(b1_slot(p, c), sl, nb, q)
                                a(f"ds_read_b64_tr_b16 {vr(BR+8*(4*c+sl)+4*nb+2*q,2)}, v{vb} offset:{imm}")
            if p == 0:
                a(f"s_min_u32 s70, s{sN2B}, 768\ns_load_dwordx16 s[4:19], s[{sB2P}:{sB2P+1}], s70\ns_add_u32 s70, s70, 64")
                a(f"s_cmp_lg_u32 s{sWAVE}, 0\ns_cbranch_scc1 L_nc\nv_lshlrev_b32 v11, 2, v1\nv_and_b32 v11, 63, v11\nbuffer_load_dword v16, v11, {srd(sDBG)}, 0 offen sc1\nL_nc:")
            b1regs([0, 1])
            if p == 0:
                a("v_mov_b32 v29, 0xffff0000\ns_mov_b32 s82, 0\ns_mov_b32 s83, -1\ns_waitcnt lgkmcnt(0)")
                self.unpack_bias(4, ACC)
                a(f"s_load_dwordx16 s[4:19], s[{sB2P}:{sB2P+1}], s70")
            self.wait_vm("BL"); a("s_waitcnt lgkmcnt(0)"); self.bar()
            self.stamp("y")
            if p == 0:
                a(f"s_cmp_lg_u32 s{sWAVE}, 0\ns_cbranch_scc1 L_nf\ns_mov_b32 s71, 0")
                a("L_cert:\ns_waitcnt vmcnt(0)\nv_cmp_eq_u32 vcc, 0, v16\ns_nop 1\ns_cbranch_vccz L_certok")
                a(f"s_add_u32 s71, s71, 1\ns_cmp_ge_u32 s71, 0x40000\ns_cbranch_scc1 L_certok\ns_sleep 2\nbuffer_load_dword v16, v11, {srd(sDBG)}, 0 offen sc1\ns_branch L_cert")
                a(f"L_certok:\ns_lshl_b32 s72, s{sG}, 12\ns_lshl_b32 s73, s{sTYPE}, 5\ns_add_u32 s72, s72, s73\ns_lshl_b32 s73, s{sNT}, 2\ns_add_u32 s72, s72, s73\ns_add_u32 s72, s72, {FLAG_BASE}")
                a(f"v_mov_b32 v16, 1\nv_mov_b32 v17, 0\ns_mov_b64 exec, 1\nbuffer_store_dword v16, v17, {srd(sWS)}, s72 offen sc1\ns_mov_b64 exec, -1\nL_nf:")
            a(f"s_cmp_ge_u32 s{sN2B}, 896\ns_cbranch_scc1 L_FIN")
            for s in range(12, 20): self.f_b(2, s, "B2")()
            b1regs([2, 3])
            if p == 0: self.unpack_bias(4, ACC + 16)
            a("s_waitcnt lgkmcnt(0)"); self.bar()
            self.stamp("v")
            for s in range(4, 12): self.f_b(2, s, "B2")()
            self.vmop(f"buffer_load_dwordx4 v[12:15], v3, {srd(sX)}, 0 offen offset:{32*p}", "xr")
            if p == 0:
                a(f"s_cmp_lg_u32 s{sWAVE}, 0\ns_cbranch_scc1 L_np\ns_mov_b32 s71, 0\ns_lshr_b32 s72, s{sM2}, 1\ns_lshl_b32 s72, s72, 12\ns_add_u32 s72, s72, {FLAG_BASE}")
                a(f"L_poll:\nbuffer_load_dword v16, v11, {srd(sWS)}, s72 offen sc1\ns_waitcnt vmcnt(0)\nv_cmp_ne_u32 vcc, 1, v16\ns_nop 1\ns_cbranch_vccz L_np")
                a("s_add_u32 s71, s71, 1\ns_cmp_ge_u32 s71, 0x40000\ns_cbranch_scc1 L_np\ns_sleep 1\ns_branch L_poll\nL_np:")
            self.bar()
            self.stamp("poll")
            nL = P_NL[p]; nst = nL + 16
            order = [("r", k) for k in range(8)] + [("l", k) for k in range(nL)] + [("r", k) for k in range(8, 16)]
            gstep = lambda o: P_FIRST[p] + (o[1] if o[0] == "l" else nL + o[1])
            def lda(n):
                a(f"s_add_u32 s74, s{sAB}, {gstep(order[n])*1024}")
                self.vmop(f"buffer_load_dwordx4 {vr(AF+4*(n%16),4)}, v2, {srd(sWS)}, s74 offen sc1", f"a{n}")
            def rdb(n):
                if order[n][0] != "l": return
                k = order[n][1]
                for nb in range(2):
                    for q in range(2):
                        vb, imm = baddr(B2_SLOT[(p, k // 4)], k % 4, nb, q)
                        self.lgop(f"ds_read_b64_tr_b16 {vr(BF+8*(n&1)+4*nb+2*q,2)}, v{vb} offset:{imm}", f"b{n}")
            for n in range(16): lda(n)
            for n in range(nst):
                self.wait_vm(f"a{n}"); self.wait_lg(f"b{n}")
                for nb in range(2):
                    w = BF + 8 * (n & 1) + 4 * nb if order[n][0] == "l" else BR + 8 * order[n][1] + 4 * nb
                    c = "0" if (n == 0 and p != 0) else vr(ACC + 16 * nb, 16)
                    a(f"v_mfma_f32_32x32x16_bf16 {vr(ACC+16*nb,16)}, {vr(w,4)}, {vr(AF+4*(n%16),4)}, {c}")
                if n == 5: self.bar()
                if n + 2 < nst: rdb(n + 2)
                if n + 16 < nst: lda(n + 16)
                if n == 8 + nL: self.bar()
            self.stamp("mm")
            a(f"s_lshl_b32 s70, s{sMH}, 15\nv_add_u32 v8, s70, v2")
            a("v_permlane32_swap_b32 v12, v14\nv_permlane32_swap_b32 v13, v15")
            X = 64
            for j in range(4): a(f"v_lshlrev_b32 v{X+2*j}, 16, v{12+j}\nv_and_b32 v{X+2*j+1}, 0xffff0000, v{12+j}")
            for d in range(4):
                if d == p: continue
                for j in range(2): a(f"ds_write_b128 v8, {vr(ACC+8*d+4*j,4)} offset:{(d*4+p)*2048+1024*j}")
            a("s_waitcnt lgkmcnt(0)"); self.bar()
            R = {}; k = 0
            for src in range(4):
                if src == p: R[src] = ACC + 8 * p; continue
                R[src] = 32 + 8 * k; k += 1
                for j in range(2): a(f"ds_read_b128 {vr(R[src]+4*j,4)}, v8 offset:{(p*4+src)*2048+1024*j}")
            a("s_waitcnt lgkmcnt(0)")
            T, U = 72, 80
            for k in range(8): a(f"v_add_f32 v{T+k}, v{R[0]+k}, v{R[1]+k}")
            for k in range(8): a(f"v_add_f32 v{T+k}, v{T+k}, v{R[2]+k}")
            for k in range(8): a(f"v_mul_f32 v{U+k}, {hx(-LOG2E)}, v{T+k}")
            for k in range(8): a(f"v_exp_f32 v{U+k}, v{U+k}")
            for k in range(8): a(f"v_mul_f32 v{T+k}, v{T+k}, v{R[3]+k}")
            for k in range(8): a(f"v_add_f32 v{U+k}, 1.0, v{U+k}")
            for k in range(8): a(f"v_rcp_f32 v{U+k}, v{U+k}")
            for k in range(8): a(f"v_fmac_f32 v{X+k}, v{T+k}, v{U+k}")
            for k in range(4): a(f"v_cvt_pk_bf16_f32 v{88+k}, v{X+2*k}, v{X+2*k+1}")
            a("v_permlane32_swap_b32 v88, v90\nv_permlane32_swap_b32 v89, v91")
            a(f"buffer_store_dwordx4 v[88:91], v3, {srd(sOUT)}, 0 offen offset:{32*p}")
            if p < 3: a("s_branch L_FIN")

    def write_stamps(self):
        if not self.stamps: return
        a = self.a
        a("s_waitcnt vmcnt(0)\ns_memrealtime s[100:101]\ns_waitcnt lgkmcnt(0)")
        a(f"s_lshl_b32 s70, s2, 3\ns_add_u32 s70, s70, s{sWAVE}\ns_lshl_b32 s70, s70, 6\nv_mov_b32 v40, s70")
        for k in range(8): a(f"v_mov_b32 v{32+k}, s{84+2*k}")
        a("v_mov_b32 v44, s100\nv_mov_b32 v45, 0\nv_mov_b32 v46, 0\nv_mov_b32 v47, 0\ns_mov_b64 exec, 1")
        a(f"buffer_store_dwordx4 v[32:35], v40, {srd(sWS)}, 0 offen\nbuffer_store_dwordx4 v[36:39], v40, {srd(sWS)}, 0 offen offset:16\nbuffer_store_dwordx4 v[44:47], v40, {srd(sWS)}, 0 offen offset:32")

    def build(self, verbose=False):
        a = self.a
        self.prologue(); self.vm0 = list(self.vm)
        a(f"s_cmp_eq_u32 s{sTYPE}, 1\ns_cbranch_scc1 L_Q\ns_cmp_ge_u32 s{sWAVE}, 4\ns_cbranch_scc1 L_HB")
        self.type_h(False); self.type_h(True); self.type_q(); self.phase2()
        a("L_FIN:"); self.write_stamps(); a("L_END:\ns_endpgm")
        n = a.fix_hazards(verbose)
        name = BASE + "_kernel"
        s = "; @launch grid=(256,1,1) block=(512,1,1) lds=163840\n"
        s += '.amdgcn_target "amdgcn-amd-amdhsa--gfx950"\n.text\n'
        s += f".globl {name}\n.p2align 8\n.type {name},@function\n{name}:\n" + a.text()
        s += f""".section .rodata,"a"
.p2align 6
.amdhsa_kernel {name}
  .amdhsa_next_free_vgpr 256
  .amdhsa_next_free_sgpr 102
  .amdhsa_accum_offset 256
  .amdhsa_group_segment_fixed_size 0
  .amdhsa_kernarg_size 88
  .amdhsa_user_sgpr_count 2
  .amdhsa_user_sgpr_kernarg_segment_ptr 1
  .amdhsa_system_sgpr_workgroup_id_x 1
.end_amdhsa_kernel
"""
        return s

if __name__ == "__main__":
    out = sys.argv[1]
    st = sys.argv[2].split(",") if len(sys.argv) > 2 and sys.argv[2] != "-" else None
    open(out, "w").write(Gen(st).build(verbose=len(sys.argv) > 3))
```

```python
import sys, struct, math, os
sys.path.insert(0, "gen")
from asmlib import Asm

BASE = "recurrent_scan__sliding_local_dilated__mixer_channel_mlp__prompt"
f2u = lambda x: struct.unpack("<I", struct.pack("<f", x))[0]
hx = lambda x: "0x%08x" % f2u(x)

A_BASE = 0x100000
FLAG_BASE = 0x40000
LOG2E = 1.4426950408889634
NEG = -1.0e30
SLOT = 8192

sX, sWA, sWS, sDBG, sW2, sWO, sOUT = 28, 32, 36, 40, 44, 48, 52
sB2P = 58
sWAVE, sG, sNT, sTYPE, sM2, sN2B, sW1K = 60, 61, 62, 63, 64, 65, 66
sONES, sC2, sI = 67, 68, 69
vB, vT, vCA, vC = 31, 254, 23, 30
srd = lambda b: f"s[{b}:{b+3}]"
vr = lambda b, n: f"v[{b}:{b+n-1}]" if n > 1 else f"v{b}"

P_FIRST = [0, 40, 76, 112]; P_NL = [24, 20, 20, 16]
def b1_src(p, c): return (sWO, 224 + 56 * c) if p == 3 else (sW2, 16 * (P_FIRST[p] + P_NL[p]) + 64 * c)
def b2_src(p, c): return (sWO, 56 * c) if p == 3 else (sW2, 16 * P_FIRST[p] + 64 * c)
def b1_slot(p, c): return 2 * p + c if c < 2 else 8 + 2 * p + (c - 2)
B2_SLOT = {}
for _p in range(4):
    B2_SLOT[(_p, 0)] = 16 + _p; B2_SLOT[(_p, 1)] = 2 * _p; B2_SLOT[(_p, 2)] = 2 * _p + 1; B2_SLOT[(_p, 3)] = 8 + _p
B2_SLOT[(0, 4)] = 12; B2_SLOT[(1, 4)] = 13; B2_SLOT[(2, 4)] = 14; B2_SLOT[(0, 5)] = 15
B1_BY_SLOT = {b1_slot(p, c): (p, c) for p in range(4) for c in range(4)}
B2_BY_SLOT = {v: k for k, v in B2_SLOT.items()}

class Gen:
    def __init__(self, stamps=None, opt=None):
        self.a = Asm(); self.stamps = stamps; self.opt = opt or {}
        self.vm = []; self.lg = []
    def on(self, k): return bool(self.opt.get(k)) if k == "touchA" else not self.opt.get("no_" + k)
    def vmop(self, text, tag): self.a(text); self.vm.append(tag)
    def lgop(self, text, tag): self.a(text); self.lg.append(tag)
    def _idx(self, lst, tags): return max([i for i, t in enumerate(lst) if t in tags], default=-1)
    def wait_vm(self, *tags):
        idx = self._idx(self.vm, tags)
        if idx < 0: return
        n = sum(1 for t in self.vm[idx + 1:] if not t.startswith("#"))
        self.a(f"s_waitcnt vmcnt({min(n,63)})"); self.vm = self.vm[idx + 1:]
    def wait_lg(self, *tags):
        idx = self._idx(self.lg, tags)
        if idx < 0: return
        self.a(f"s_waitcnt lgkmcnt({min(len(self.lg)-1-idx,15)})"); self.lg = self.lg[idx + 1:]
    def lg0(self): self.a("s_waitcnt lgkmcnt(0)"); self.lg = []
    def stamp(self, name):
        if self.stamps and name in self.stamps:
            k = self.stamps.index(name); self.a(f"s_memrealtime s[{84+2*k}:{85+2*k}]")
        if self.stamps and "c" + name in self.stamps:
            k = self.stamps.index("c" + name); self.a(f"s_memtime s[{84+2*k}:{85+2*k}]")
    def mksrd(self, d, b, n):
        self.a(f"s_mov_b32 s{d}, s{b}\ns_mov_b32 s{d+1}, s{b+1}\ns_mov_b32 s{d+2}, {n}\ns_mov_b32 s{d+3}, 0x20000")
    def bar(self): self.a("s_barrier")

    def prologue(self):
        a = self.a
        a("s_cmp_ge_u32 s2, 256\ns_cbranch_scc1 L_END")
        self.stamp("start")
        a("s_load_dwordx16 s[4:19], s[0:1], 0\ns_load_dwordx4 s[20:23], s[0:1], 64\ns_load_dwordx2 s[24:25], s[0:1], 80")
        a("v_and_b32 v1, 63, v0\nv_lshrrev_b32 v12, 6, v0\nv_lshlrev_b32 v2, 4, v1")
        a(f"v_readfirstlane_b32 s{sWAVE}, v12")
        a(f"s_and_b32 s70, s2, 7\ns_lshr_b32 s{sI}, s2, 3")
        if not self.opt.get("newmap") and not self.opt.get("midmap"):
            a(f"s_and_b32 s{sG}, s70, 1\ns_lshl_b32 s{sG}, s{sG}, 3\ns_and_b32 s72, s{sI}, 7\ns_add_u32 s{sG}, s{sG}, s72")
            a(f"s_and_b32 s{sNT}, s70, 6\ns_lshr_b32 s72, s{sI}, 4\ns_add_u32 s{sNT}, s{sNT}, s72\ns_bfe_u32 s{sTYPE}, s{sI}, 0x10003")
        elif self.opt.get("midmap"):
            a(f"s_lshr_b32 s{sG}, s70, 1\ns_lshl_b32 s{sG}, s{sG}, 2\ns_and_b32 s72, s{sI}, 3\ns_add_u32 s{sG}, s{sG}, s72")
            a(f"s_and_b32 s{sNT}, s70, 1\ns_lshl_b32 s{sNT}, s{sNT}, 2\ns_lshr_b32 s72, s{sI}, 4\ns_lshl_b32 s72, s72, 1\ns_add_u32 s{sNT}, s{sNT}, s72\ns_bfe_u32 s72, s{sI}, 0x10002\ns_add_u32 s{sNT}, s{sNT}, s72\ns_bfe_u32 s{sTYPE}, s{sI}, 0x10003")
        else:
            a(f"s_lshl_b32 s{sG}, s70, 1\ns_lshr_b32 s72, s{sI}, 4\ns_add_u32 s{sG}, s{sG}, s72")
            a(f"s_and_b32 s{sNT}, s{sI}, 7\ns_bfe_u32 s{sTYPE}, s{sI}, 0x10003")
        a(f"s_lshl_b32 s{sM2}, s70, 2\ns_and_b32 s73, s{sI}, 3\ns_add_u32 s{sM2}, s{sM2}, s73\ns_lshr_b32 s72, s{sI}, 2\ns_lshl_b32 s{sN2B}, s72, 7")
        a(f"s_mov_b32 s{sONES}, 0x3f803f80\ns_and_b32 s{sW1K}, s{sWAVE}, 3\ns_lshl_b32 s{sW1K}, s{sW1K}, 10")
        a(f"v_lshrrev_b32 v3, 3, v0\ns_lshl_b32 s70, s{sWAVE}, 3\nv_add_u32 v3, s70, v3\nv_mul_u32_u24 v3, 896, v3")
        a("v_and_b32 v12, 7, v0\nv_lshl_add_u32 v3, v12, 4, v3")
        a(f"s_mul_i32 s70, s{sG}, {128*896}\ns_add_u32 s71, s70, {8*896}")
        a("s_waitcnt lgkmcnt(0)")
        self.mksrd(sX, 4, 2048 * 896)
        for grp in range(2):
            for j in range(7):
                self.vmop(f"buffer_load_dwordx4 {vr(32+(grp*7+j)*4,4)}, v3, {srd(sX)}, s{70+grp} offen offset:{128*j}", f"x{grp}{j}")
        self.stamp("xiss")

    def common_setup(self):
        a = self.a
        self.mksrd(sWS, 24, 1 << 28); self.mksrd(sDBG, 22, 256); self.mksrd(sW2, 16, 1792 * 896); self.mksrd(sWO, 8, 448 * 896); self.mksrd(sOUT, 20, 2048 * 896)
        a(f"s_mov_b64 s[{sB2P}:{sB2P+1}], s[18:19]")
        a(f"v_lshlrev_b32 v{vCA}, 2, v1\nv_and_b32 v{vCA}, 63, v{vCA}\nv_lshlrev_b32 v255, 7, v1")
        a(f"v_bfe_u32 v12, v0, 3, 5\nv_mul_u32_u24 v{vB}, 896, v12\nv_lshrrev_b32 v13, 2, v1\nv_and_b32 v13, 4, v13\nv_and_b32 v12, 7, v1\nv_xor_b32 v12, v12, v13\nv_lshl_add_u32 v{vB}, v12, 4, v{vB}")

    def f_dma(self, voff, srdb, sbase, add, lds, tag):
        def f():
            self.a(f"s_add_u32 m0, s{sW1K}, {lds}\ns_add_u32 s74, {sbase}, {add}")
            self.vmop(f"buffer_load_dwordx4 v{voff}, {srd(srdb)}, s74 offen lds", tag)
        return f
    def f_b(self, which, slot, half, tag):
        p, c = (B1_BY_SLOT if which == 1 else B2_BY_SLOT)[slot]
        sr, row = (b1_src if which == 1 else b2_src)(p, c)
        return self.f_dma(vB, sr, f"s{sN2B}", (row + 32 * half) * 896, slot * SLOT + 4096 * half, tag)

    def dma_voff(self, stride):
        a = self.a
        a(f"v_bfe_u32 v12, v0, 3, 5\nv_mul_u32_u24 v4, {stride}, v12")
        a(f"v_lshrrev_b32 v13, 2, v1\nv_and_b32 v13, 4, v13\ns_and_b32 s70, s{sWAVE}, 1\ns_lshl_b32 s70, s70, 1\nv_or_b32 v13, s70, v13")
        a("v_and_b32 v12, 7, v1\nv_xor_b32 v12, v12, v13\nv_lshl_add_u32 v4, v12, 4, v4")

    def touches(self, rowbytes):
        if not self.on("touchW"): return
        a = self.a
        n1 = (28 * rowbytes + 8191) // 8192
        a(f"s_lshr_b32 s70, s{sI}, 4\ns_lshl_b32 s71, s{sNT}, 1\ns_add_u32 s70, s70, s71\ns_mul_i32 s70, s70, {28*rowbytes}\ns_lshl_b32 s71, s{sW1K}, 3\ns_add_u32 s70, s70, s71")
        for k in range((n1 + 3) // 4):
            self.vmop(f"buffer_load_dword v{vT}, v255, {srd(sWA)}, s70 offen sc1", "tw"); a("s_add_u32 s70, s70, 32768")
        a(f"s_mul_i32 s70, s{sI}, {56*896}\ns_add_u32 s70, s70, s71")
        for k in range(2):
            self.vmop(f"buffer_load_dword v{vT}, v255, {srd(sW2)}, s70 offen sc1", "tw"); a("s_add_u32 s70, s70, 32768")
        a(f"s_mul_i32 s70, s{sI}, {14*896}\ns_lshr_b32 s71, s71, 1\ns_add_u32 s70, s70, s71")
        self.vmop(f"buffer_load_dword v{vT}, v255, {srd(sWO)}, s70 offen sc1", "tw")

    def f_touchB(self):
        def f():
            if not self.on("touchB"): return
            an = self.a
            an(f"v_mul_u32_u24 v253, 7, v255\ns_and_b32 s75, s{sM2}, 3\ns_lshl_b32 s75, s75, 3\ns_add_u32 s75, s75, s{sWAVE}\ns_lshl_b32 s74, s75, 5")
            an("s_cmp_ge_u32 s75, 12\ns_cselect_b32 s73, 256, 0\ns_add_u32 s74, s74, s73\ns_cmp_ge_u32 s75, 22\ns_cselect_b32 s73, 256, 0\ns_add_u32 s74, s74, s73")
            an(f"s_mul_i32 s74, s74, 896\ns_add_u32 s74, s74, s{sN2B}\ns_mov_b64 exec, 0xffffffff")
            self.vmop(f"buffer_load_dword v{vT}, v253, {srd(sW2)}, s74 offen sc1", "tb")
            an(f"s_mul_i32 s74, s75, {8*896}\ns_add_u32 s74, s74, s{sN2B}\ns_mov_b64 exec, 0xff")
            self.vmop(f"buffer_load_dword v{vT}, v253, {srd(sWO)}, s74 offen sc1", "tb")
            an("s_mov_b64 exec, -1")
        return f

    def f_touchA(self, tag, sbase, add):
        def f():
            if not self.on("touchA"): return
            self.wait_vm(tag)
            self.a(f"s_add_u32 s75, {sbase}, {add}\ns_mov_b64 exec, 0xffff")
            self.vmop(f"buffer_load_dword v{vT}, v255, {srd(sWS)}, s75 offen sc1", "ta")
            self.a("s_mov_b64 exec, -1")
        return f

    def reduce_dpp(self, regs, wide):
        a = self.a
        steps = ["quad_perm:[1,0,3,2]", "quad_perm:[2,3,0,1]", "row_half_mirror"] + (["row_mirror"] if wide else [])
        for st in steps:
            for r in regs: a(f"v_add_f32_dpp v{r}, v{r}, v{r} {st} row_mask:0xf bank_mask:0xf")
        if wide:
            for r in regs: a(f"v_mov_b32 v{r+4}, v{r}")
            for r in regs: a(f"v_permlane16_swap_b32 v{r}, v{r+4}")
            for r in regs: a(f"v_add_f32 v{r}, v{r}, v{r+4}")

    def ln_scale(self, s1, s2, second):
        a = self.a; t = s2 + 1
        a(f"v_mul_f32 v{s1}, {hx(1/448)}, v{s1}\nv_mul_f32 v{s2}, {hx(1/448)}, v{s2}")
        a(f"v_fma_f32 v{s2}, -v{s1}, v{s1}, v{s2}\nv_max_f32 v{s2}, 0, v{s2}")
        a(f"v_add_f32 v{t}, {hx(1e-5)}, v{s2}\nv_rsq_f32 v{t}, v{t}")
        if second:
            a(f"v_mul_f32 v{s2}, v{s2}, v{t}\nv_mul_f32 v{s2}, v{s2}, v{t}\nv_add_f32 v{s2}, {hx(1e-5)}, v{s2}\nv_rsq_f32 v{s2}, v{s2}")
            a(f"v_mul_f32 v{t}, v{t}, v{s2}")
        a(f"v_cvt_pk_bf16_f32 v{t}, v{t}, 0\nv_lshlrev_b32 v{s2}, 16, v{t}")
        a(f"v_mul_f32 v{t+1}, v{s1}, v{s2}\nv_mov_b32 v{s1}, v{t}\nv_sub_f32 v{t}, 0, v{t+1}")

    def stats(self, base, n, s1, s2, tags):
        a = self.a
        a(f"v_mov_b32 v{s1}, 0\nv_mov_b32 v{s2}, 0")
        for j in range(n):
            self.wait_vm(tags[j])
            for k in range(4):
                r = base + 4 * j + k
                a(f"v_dot2c_f32_bf16 v{s1}, s{sONES}, v{r}\nv_dot2c_f32_bf16 v{s2}, v{r}, v{r}")

    def normalize(self, base, clo, chi, nm, tmp):
        a = self.a
        for k in range(4):
            a(f"v_dot2_f32_bf16 v{tmp+2*k}, v{base+k}, v{clo}, v{nm}\nv_dot2_f32_bf16 v{tmp+2*k+1}, v{base+k}, v{chi}, v{nm}")
        for k in range(4):
            a(f"v_cvt_pk_bf16_f32 v{base+k}, v{tmp+2*k}, v{tmp+2*k+1}")

    def ln_main(self, second, qtype, after_st0=()):
        a = self.a
        a(f"v_lshrrev_b32 v12, 3, v1\ns_lshl_b32 s70, s{sWAVE}, 4")
        if qtype: a(f"s_and_b32 s71, s{sWAVE}, 4\ns_lshl_b32 s71, s71, 2\ns_add_u32 s70, s70, s71")
        a("v_add_u32 v12, s70, v12\nv_mul_u32_u24 v12, 896, v12")
        a("v_lshrrev_b32 v13, 4, v1\nv_and_b32 v14, 7, v1\nv_xor_b32 v13, v13, v14")
        a(f"v_lshl_add_u32 v6, v13, 4, v12\nv_xor_b32 v13, 4, v13\nv_lshl_add_u32 v7, v13, 4, v12\nv_add_u32 v7, {8*896}, v7")
        self.stamp("setup")
        S = [(104, 105), (112, 113)]
        for grp in range(2):
            s1, s2 = S[grp]
            self.stats(32 + grp * 28, 7, s1, s2, [f"x{grp}{j}" for j in range(7)])
            self.stamp(f"st{grp}")
            if grp == 0:
                for f in after_st0: f()
            self.reduce_dpp([s1, s2], False)
            self.ln_scale(s1, s2, second)
            for j in range(7):
                b = 32 + (grp * 7 + j) * 4
                self.normalize(b, s1, s2, s2 + 1, 96)
                a(f"ds_write_b128 v{6+grp}, {vr(b,4)} offset:{128*j}")
        self.stamp("lnend")

    def f_ld(self, dst, voff, sbase, add, tag):
        def f():
            self.a(f"s_add_u32 s74, {sbase}, {add}")
            self.vmop(f"buffer_load_dwordx4 {vr(dst,4)}, v{voff}, {srd(sWA)}, s74 offen", tag)
        return f
    def f_wr(self, src, lds, tag, wtag):
        def f():
            self.wait_vm(tag)
            self.lgop(f"ds_write_b128 v{self.vwr + (lds >> 16)}, {vr(src,4)} offset:{lds & 0xffff}", wtag)
        return f

    def cert_load(self, L):
        self.a(f"s_cmp_lg_u32 s{sWAVE}, 0\ns_cbranch_scc1 L_nc{L}\nbuffer_load_dword v{vC}, v{vCA}, {srd(sDBG)}, 0 offen sc1\nL_nc{L}:")
        self.vm.append("#cert")
    def cert_check(self, L):
        a = self.a
        a(f"s_cmp_lg_u32 s{sWAVE}, 0\ns_cbranch_scc1 L_cok{L}\ns_mov_b32 s71, 0")
        a(f"L_cert{L}:\nv_cmp_eq_u32 vcc, 0, v{vC}\ns_nop 1\ns_cbranch_vccz L_cok{L}")
        a(f"s_add_u32 s71, s71, 1\ns_cmp_ge_u32 s71, 0x40000\ns_cbranch_scc1 L_cok{L}\ns_sleep 2\nbuffer_load_dword v{vC}, v{vCA}, {srd(sDBG)}, 0 offen sc1\ns_waitcnt vmcnt(0)\ns_branch L_cert{L}\nL_cok{L}:")

    def unpack_bias(self, sb, acc):
        a = self.a
        for hh in range(2):
            if hh: a("s_mov_b64 exec, s[82:83]")
            for j in range(4):
                for k in range(2):
                    s = sb + 4 * j + 2 * hh + k
                    a(f"v_lshlrev_b32 v{acc+4*j+2*k}, 16, s{s}\nv_and_b32 v{acc+4*j+2*k+1}, s{s}, v29")
        a("s_mov_b64 exec, -1")

    def pipeline(self, n, depth, rd, mm, events, fillers):
        nxt = 0; hold = False
        while nxt < min(depth, n): rd(nxt); nxt += 1
        for i in range(n):
            while nxt <= i: rd(nxt); nxt += 1
            mm(i)
            for e in events.get(i, []):
                if e == "hold": hold = True
                elif e == "go": hold = False
                else: e()
            while not hold and nxt < min(i + 1 + depth, n): rd(nxt); nxt += 1
            for f in fillers.get(i, []): f()

    @staticmethod
    def spread(fillers, items, lo, hi):
        n = hi - lo
        for k, it in enumerate(items):
            fillers.setdefault(lo + k * n // len(items), []).append(it)

    def gelu_items(self, acc, sbase, add, tag):
        a = self.a; L = []
        I = lambda s: L.append(lambda s=s: a(s))
        T = lambda k: (232, 233, 234, 235, 236, 237, 238, 239, 248, 249)[k % 10]
        stage = [
            lambda k: f"v_mul_f32 v{T(k)}, v{acc+k}, v{acc+k}",
            lambda k: f"v_fma_f32 v{T(k)}, v{T(k)}, s{sC2}, v27",
            lambda k: f"v_mul_f32 v{T(k)}, v{T(k)}, v{acc+k}",
            lambda k: f"v_exp_f32 v{T(k)}, v{T(k)}",
            lambda k: f"v_add_f32 v{T(k)}, 1.0, v{T(k)}",
            lambda k: f"v_rcp_f32 v{T(k)}, v{T(k)}",
            lambda k: f"v_mul_f32 v{T(k)}, v{acc+k}, v{T(k)}",
        ]
        for t in range(16 + 7):
            k = t - 7
            if 0 <= k < 16 and k & 1:
                I(f"v_cvt_pk_bf16_f32 v{240+(k>>1)}, v{T(k-1)}, v{T(k)}")
                if k & 7 == 7:
                    def st(h=k >> 3):
                        a(f"s_add_u32 s75, {sbase}, {add*32+1024*h}")
                        self.vmop(f"buffer_store_dwordx4 {vr(240+4*h,4)}, v2, {srd(sWS)}, s75 offen sc1", tag)
                    L.append(st)
            for sg in (6, 3, 4, 2, 5, 1, 0):
                k = t - sg
                if 0 <= k < 16: I(stage[sg](k))
        return L

    def type_h(self, grpB):
        a = self.a; L = "HB" if grpB else "HA"
        RD, R1 = 106496, 49152
        RU = 32 * 3584
        self.vm = list(self.vm0); self.lg = []
        a(f"L_{L}:")
        self.mksrd(sWA, 12, 448 * 3584); self.mksrd(4, 14, 3584)
        a(f"s_lshr_b32 s70, s{sNT}, 1\ns_mul_i32 s70, s70, 896\ns_and_b32 s71, s{sNT}, 1\ns_lshl_b32 s76, s71, 9\ns_add_u32 s76, s76, s70")
        a("s_lshl_b32 s77, s71, 6\ns_add_u32 s77, s77, s70\ns_add_u32 s77, s77, 384")
        if grpB: blocks = [("s76", 0), ("s76", 128), ("s76", 256)]
        else: blocks = [("s76", 64), ("s77", 0), ("s76", 192), ("s76", 320)]
        self.dma_voff(3584)
        rot = lambda u: RD + ((u + 2) % 14) * 4096
        uD = lambda col, u, tag: self.f_dma(4, sWA, "s76", col + u * RU, rot(u), tag)
        a("v_and_b32 v29, 31, v1\nv_lshlrev_b32 v29, 1, v29")
        def bias():
            for b, (sb, off) in enumerate(blocks):
                self.vmop(f"buffer_load_ushort v{184+2*b}, v29, s[4:7], {sb} offen offset:{off}", "bias")
        if grpB:
            for u in range(4): uD(0, u, "E0")()
            bias()
        self.common_setup()
        if grpB:
            a(f"s_lshl_b32 s78, s{sNT}, 3\ns_add_u32 s78, s78, s{sWAVE}\ns_cmp_lg_u32 s78, 7\ns_cbranch_scc1 L_nolead1")
            a(f"s_lshl_b32 s70, s{sG}, 12\ns_add_u32 s70, s70, {FLAG_BASE}\nv_lshlrev_b32 v12, 3, v1\nv_mov_b32 v14, 0\nv_mov_b32 v15, 0")
            a(f"buffer_store_dwordx2 v[14:15], v12, {srd(sWS)}, s70 offen sc1\nL_nolead1:")
        a(f"v_bfe_u32 v12, v0, 2, 6\nv_mul_u32_u24 v5, 3584, v12\nv_and_b32 v12, 3, v1\nv_lshl_add_u32 v5, v12, 4, v5")
        c1 = -2.0 * math.sqrt(2.0 / math.pi) * LOG2E
        a(f"v_mov_b32 v27, {hx(c1)}\ns_mov_b32 s{sC2}, {hx(c1*0.044715)}")
        a("v_cmp_gt_u32 vcc, 32, v1\nv_mov_b32 v12, 0x3f80\nv_mov_b32 v177, 0\nv_cndmask_b32 v176, 0, v12, vcc\nv_mov_b32 v178, 0\nv_mov_b32 v179, 0")
        for r in (185, 187, 189, 191, 192, 193): a(f"v_mov_b32 v{r}, 0")
        if grpB: a("v_mov_b32 v190, 0")
        a(f"v_and_b32 v12, 31, v1\ns_and_b32 s70, s{sWAVE}, 3\ns_lshl_b32 s70, s70, 5\nv_add_u32 v13, s70, v12\nv_mul_u32_u24 v13, 896, v13")
        a("v_bfe_u32 v12, v1, 1, 3\nv_lshrrev_b32 v14, 5, v1\nv_xor_b32 v12, v12, v14")
        for i in range(4):
            a(f"v_xor_b32 v14, {2*i}, v12\nv_lshl_add_u32 v{8+i}, v14, 4, v13")
        a("v_lshrrev_b32 v12, 5, v1\nv_bfe_u32 v13, v1, 2, 2\nv_lshl_add_u32 v14, v12, 3, v13")
        a("v_bfe_u32 v15, v1, 4, 1\nv_lshlrev_b32 v15, 1, v15\nv_bfe_u32 v16, v1, 1, 1\nv_or_b32 v15, v15, v16")
        a("v_lshrrev_b32 v16, 1, v13\nv_lshlrev_b32 v16, 2, v16\nv_lshl_or_b32 v16, v12, 1, v16")
        a(f"v_xor_b32 v16, v15, v16\nv_xor_b32 v16, {0 if grpB else 4}, v16\nv_lshlrev_b32 v16, 4, v16")
        a("v_and_b32 v17, 1, v1\nv_lshl_or_b32 v16, v17, 3, v16\nv_lshl_add_u32 v24, v14, 7, v16")
        a(f"v_add_u32 v25, {R1}, v24\nv_add_u32 v24, {RD}, v24")
        a(f"v_lshlrev_b32 v15, 4, v15\nv_lshl_or_b32 v15, v17, 3, v15\nv_lshl_add_u32 v26, v14, 6, v15")
        a(f"s_and_b32 s70, s{sWAVE}, 3\ns_lshl_b32 s71, s{sG}, 2\ns_add_u32 s71, s71, s70\ns_mul_i32 s71, s71, {144*1024}\ns_add_u32 s71, s71, {A_BASE}")
        a("s_lshl_b32 s79, s76, 5\ns_add_u32 s79, s79, s71\ns_lshl_b32 s80, s77, 5\ns_add_u32 s80, s80, s71")
        quads = [160, 164, 168, 172, 180, 196, 200, 204, 232, 236, 240, 244, 248]
        ND1 = 4
        pre = [(4, "s76", u * RU, rot(u), "cL") for u in (12, 13)]
        for g in range(7):
            pre.append((5, "s77", g * 64 * 3584, g * 4096, f"c{g}"))
            for u in (2 * g, 2 * g + 1):
                if u < ND1: pre.append((4, "s76", 128 + u * RU, R1 + u * 4096, f"c{g}"))
        self.vwr = 18
        if not grpB: a(f"v_add_u32 v18, s{sW1K}, v2\nv_add_u32 v19, 0x10000, v18")
        self.ln_main(True, False)
        if not grpB:
            bias()
            for u in range(4, 12): uD(0, u, "E")()
            for k, (vo, sb, add, lds, wt) in enumerate(pre): self.f_ld(quads[k], vo, sb, add, f"r{k}")()
            self.wait_vm("bias")
        else:
            a("s_waitcnt vmcnt(0)"); self.vm = []
            a("s_cmp_lg_u32 s78, 7\ns_cbranch_scc1 L_nolead2")
            a(f"s_lshl_b32 s70, s{sG}, 2\nv_mov_b32 v12, s70\nv_mov_b32 v13, 1\ns_mov_b64 exec, 1")
            a(f"buffer_store_dword v13, v12, {srd(sDBG)}, 0 offen sc1\ns_mov_b64 exec, -1\nL_nolead2:")
        self.lg0(); self.bar()
        self.stamp("x1")
        WF = lambda i: 208 + 4 * (i % 6)
        adS = lambda s, q: (26, 1024 * s + 256 * q)
        adD = lambda s, q: (24, 2048 * ((s + 4) % 28) + 512 * q)
        ad1 = lambda s, q: (25, 2048 * s + 512 * q)
        seq = [adD, ad1, adD] if grpB else [adD, adS, ad1, adD]
        n = 28 * len(seq)
        ACC = lambda b: 144 + 16 * (b & 1)
        def xr(s): self.lgop(f"ds_read_b128 {vr(32+4*s,4)}, v{8+(s&3)} offset:{128*(s>>2)}", f"xf{s}")
        def rd(i):
            b, s = divmod(i, 28)
            if i < 4: xr(i)
            for q in range(2):
                vb, imm = seq[b](s, q)
                self.lgop(f"ds_read_b64_tr_b16 {vr(WF(i)+2*q,2)}, v{vb} offset:{imm}", f"w{i}")
        def mm(i):
            b, s = divmod(i, 28); acc = ACC(b)
            if s == 0: a(f"v_mfma_f32_32x32x16_bf16 {vr(acc,16)}, {vr(184+2*b,4)}, v[176:179], 0")
            self.wait_lg(f"w{i}", f"xf{i}")
            a(f"v_mfma_f32_32x32x16_bf16 {vr(acc,16)}, {vr(WF(i),4)}, {vr(32+4*s,4)}, {vr(acc,16)}")
        ev = {}; fi = {}
        E = lambda i, *x: ev.setdefault(i, []).extend(x)
        wv = lambda *t: (lambda: self.wait_vm(*t))
        wl = lambda t: (lambda: self.wait_lg(t))
        st = lambda nm: (lambda: self.stamp(nm))
        for i in range(5): fi[i] = [lambda s=s: xr(s) for s in range(4 + 5 * i, min(28, 9 + 5 * i))]
        uS = lambda u, tag: self.f_dma(5, sWA, "s77", u * 64 * 3584, u * 4096, tag)
        u1 = lambda u, tag: self.f_dma(4, sWA, "s76", 128 + u * RU, R1 + u * 4096, tag)
        fb = lambda units: [self.f_b(1, s, h, "BE") for s, h in units]
        both = lambda slots: [(s, h) for s in slots for h in range(2)]
        X2 = 6
        E(4, "hold")
        E(X2, wl("xf27"), wv("E"), self.bar, st("m0"), "go")
        if not grpB:
            self.spread(fi, [self.f_wr(quads[k], lds, f"r{k}", wt) for k, (vo, sb, add, lds, wt) in enumerate(pre)], X2, X2 + 16)
        else:
            self.spread(fi, [u1(u, f"c{u//2}") for u in range(ND1, 14)], X2, X2 + 10)
        def cert(i, tags, *more):
            E(i, (lambda: self.wait_vm(*tags)) if grpB else (lambda: self.wait_lg(*tags)), self.bar, *more)
        cert(19, ["cL", "c0", "c1"], st("m1"))
        cert(28, ["c2", "c3"], st("m2"))
        cert(38, ["c4", "c5", "c6"])
        d2 = [uD(256, u, "D2") for u in (range(4, 14) if grpB else range(4))]
        self.spread(fi, d2, 28, 28 + len(d2))
        if not grpB: self.spread(fi, [lambda: self.cert_load(L)] + fb(both([4])), 40, 48)
        else: self.spread(fi, fb(both([5])), 42, 48)
        E(51, wv("D2"), self.bar, st("m3")); fi.setdefault(52, []).append(self.f_touchB())
        E(57, *([wv("#cert"), lambda: self.cert_check(L)] if not grpB else []), self.bar, st("m4"))
        self.spread(fi, fb(both([0]) if not grpB else both([1, 2, 3])), 57, 75)
        if not grpB:
            E(85, self.bar, st("m5")); self.spread(fi, fb(both([6, 7])), 86, 104)
            outs = [("s79", 64), ("s80", 0), ("s79", 192), ("s79", 320)]
        else:
            E(83, self.bar, st("m5"))
            outs = [("s79", 0), ("s79", 128), ("s79", 256)]
        nb = len(seq)
        for b in range(nb - 1):
            self.spread(fi, self.gelu_items(ACC(b), *outs[b], f"st{b}"), 28 * (b + 1) + 1, 28 * (b + 2) - 1)
            if b + 2 < nb: fi.setdefault(28 * (b + 2) + 20, []).append(self.f_touchA(f"st{b}", outs[b][0], outs[b][1] * 32))
        self.pipeline(n, 4, rd, mm, ev, fi)
        self.stamp("m6")
        G = self.gelu_items(ACC(nb - 1), *outs[-1], "st")
        if grpB:
            for k, f in enumerate(fb(both([8, 9, 10, 11, 12]))): G.insert(12 * k, f)
        for f in G: f()
        self.finish1([13, 14, 15], int(grpB), [(o[0], o[1] * 32) for o in outs[-2:]])

    def type_q(self):
        a = self.a
        RK, XB, HALO = 106496, 73728, 57344
        RU = 32 * 2688
        KP, VP, QP = 164, 176, 188
        MC, MP, MP0, PM = 196, 200, 204, 244
        rot = lambda u: RK + ((u + 6) % 14) * 4096
        uK = lambda col, u, tag: self.f_dma(4, sWA, "s76", col + u * RU, rot(u), tag)
        uV = lambda u, tag: self.f_dma(4, sWA, "s76", 1792 + u * RU, u * 4096, tag)
        for grpB in range(2):
            self.vm = list(self.vm0); self.lg = []
            a(f"L_Q{'AB'[grpB]}:")
            a(f"s_lshl_b32 s70, s{sG}, 7\ns_lshl_b32 s71, s{sWAVE}, 1\ns_add_u32 s70, s70, s71\ns_sub_u32 s70, s70, 16\ns_mul_i32 s70, s70, 896")
            a("v_lshrrev_b32 v12, 5, v1\nv_mul_u32_u24 v12, 896, v12\nv_and_b32 v13, 31, v1\nv_lshl_add_u32 v5, v13, 4, v12\nv_add_u32 v5, s70, v5")
            a("v_mov_b32 v14, 0x80000000\nv_cmp_gt_u32 vcc, 28, v13\nv_cndmask_b32 v5, v14, v5, vcc")
            for jj in range(2):
                self.vmop(f"buffer_load_dwordx4 {vr(88+4*jj,4)}, v5, {srd(sX)}, 0 offen offset:{448*jj}", f"hx{jj}")
            self.mksrd(sWA, 6, 448 * 2688)
            self.dma_voff(2688)
            a(f"s_mul_i32 s76, s{sNT}, 112")
            if grpB:
                for u in range(4): uK(896, u, "E")()
            self.common_setup()
            a(f"s_and_b32 s81, s{sWAVE}, 1\ns_add_u32 s81, s81, {2*grpB}\ns_bfe_u32 s80, s{sWAVE}, 0x10001")
            a(f"s_lshl_b32 s70, s81, 5\ns_add_u32 s70, s70, {16*grpB}\ns_mul_i32 s70, s70, 896")
            a("v_and_b32 v12, 15, v1\nv_mul_u32_u24 v13, 896, v12\nv_bfe_u32 v12, v1, 1, 3\nv_lshrrev_b32 v14, 4, v1\nv_xor_b32 v12, v12, v14")
            a("v_lshl_add_u32 v10, v12, 4, v13\nv_xor_b32 v12, 4, v12\nv_lshl_add_u32 v11, v12, 4, v13")
            a(f"v_add_u32 v8, s70, v10\nv_add_u32 v9, s70, v11\nv_add_u32 v10, {HALO}, v10\nv_add_u32 v11, {HALO}, v11")
            a("s_mul_i32 s70, s80, 56")
            a("v_lshrrev_b32 v12, 4, v1\nv_bfe_u32 v13, v1, 2, 2\nv_lshl_add_u32 v14, v12, 3, v13\nv_lshlrev_b32 v14, 7, v14")
            a("v_lshrrev_b32 v13, 1, v13\nv_lshlrev_b32 v13, 6, v13\nv_and_b32 v12, 1, v12\nv_lshl_or_b32 v13, v12, 5, v13")
            a("v_and_b32 v12, 3, v1\nv_lshlrev_b32 v12, 3, v12\nv_add_u32 v12, s70, v12")
            a("v_xor_b32 v15, v12, v13\nv_add_u32 v24, v14, v15\nv_add_u32 v12, 32, v12\nv_xor_b32 v15, v12, v13\nv_add_u32 v25, v14, v15")
            a(f"v_add_u32 v26, {RK}, v24\nv_add_u32 v27, {RK}, v25")
            a(f"v_lshrrev_b32 v12, 5, v1\ns_lshl_b32 s70, s{sWAVE}, 1\nv_add_u32 v12, s70, v12\nv_bfe_u32 v13, v12, 1, 3\nv_mul_u32_u24 v12, 896, v12\nv_add_u32 v12, {HALO}, v12")
            a("v_and_b32 v14, 31, v1\nv_xor_b32 v15, v14, v13\nv_lshl_add_u32 v16, v15, 4, v12\nv_add_u32 v14, 28, v14\nv_xor_b32 v15, v14, v13\nv_lshl_add_u32 v17, v15, 4, v12")
            a(f"s_mul_i32 s70, s80, 10240\ns_add_u32 s70, s70, {XB}\nv_add_u32 v18, s70, v2")
            a("s_lshl_b32 s71, s81, 11\nv_add_u32 v28, s71, v18\nv_add_u32 v29, 2048, v28")
            quads = [164, 168, 172, 176, 180, 184, 188, 192, 196, 200, 204]
            pre = [(896 + u * RU, rot(u), "cL") for u in range(8, 14)] + [(1792 + u * RU, u * 4096, "cV") for u in range(5)]
            self.vwr = 250
            if not grpB: a(f"v_add_u32 v250, s{sW1K}, v2\nv_add_u32 v251, 0x10000, v250")
            self.ln_main(False, True)
            self.stats(88, 2, 104, 105, ["hx0", "hx1"])
            self.reduce_dpp([104, 105], True)
            self.ln_scale(104, 105, False)
            a("s_mov_b32 s70, 0x0fffffff\ns_mov_b32 s71, 0x0fffffff")
            for jj in range(2): self.normalize(88 + 4 * jj, 104, 105, 106, 96)
            a("s_mov_b64 exec, s[70:71]")
            for jj in range(2): a(f"ds_write_b128 v{16+jj}, {vr(88+4*jj,4)}")
            a("s_mov_b64 exec, -1")
            if not grpB:
                for u in range(4, 8): uK(896, u, "E")()
                for k, (add, lds, wt) in enumerate(pre): self.f_ld(quads[k], 4, "s76", add, f"r{k}")()
            self.wait_vm("E")
            wrs = [self.f_wr(quads[k], lds, f"r{k}", wt) for k, (add, lds, wt) in enumerate(pre)]
            self.lg0(); self.bar()
            self.stamp("x1")
            vmq = list(self.vm)
            a(f"s_bitcmp1_b32 s{sWAVE}, 0\ns_cbranch_scc1 L_Q{2*grpB+1}")
            for qt in (2 * grpB, 2 * grpB + 1):
                self.vm = list(vmq); self.lg = []
                self.q_rounds(qt, uK, uV, KP, VP, self.q_consts(MC, MP, MP0, PM), wrs)
                self.finish_q(qt, KP, VP, QP, MC, MP, MP0, PM)

    def q_consts(self, MC, MP, MP0, PM):
        L = []
        def a(t):
            L.append(lambda t=t: self.a(t))
        a("v_and_b32 v12, 15, v1\nv_lshrrev_b32 v13, 4, v1\nv_lshlrev_b32 v13, 2, v13\nv_sub_u32 v12, v12, v13")
        a(f"v_mov_b32 v14, {hx(NEG)}\nv_mov_b32 v15, 0")
        a(f"s_or_b32 s82, s81, s{sG}\ns_cmp_eq_u32 s82, 0\ns_cselect_b32 s78, {hx(NEG)}, 0")
        for r in range(4):
            a(f"v_subrev_u32 v13, {r}, v12\nv_and_b32 v19, 0x80000001, v13")
            a(f"v_cmp_eq_u32 vcc, 0, v19\nv_mov_b32 v20, {'0xffff0000' if r&1 else '0x0000ffff'}\ns_nop 0\nv_cndmask_b32 v{MC+r}, v14, v15, vcc\nv_cndmask_b32 v{21+(r&1)}, v15, v20, vcc")
            a(f"v_cmp_eq_u32 vcc, 0x80000000, v19")
            if r & 1: a(f"v_or_b32 v{PM+2+(r>>1)}, v21, v22")
            a(f"v_cndmask_b32 v{MP+r}, v14, v15, vcc\nv_cndmask_b32 v{252+(r&1)}, v15, v20, vcc")
            if r & 1: a(f"v_or_b32 v{PM+(r>>1)}, v252, v253")
            a(f"v_min_f32 v{MP0+r}, s78, v{MP+r}")
        qs = 28 ** -0.5 * LOG2E
        a(f"v_cmp_gt_u32 vcc, 48, v1\nv_mov_b32 v19, {hx(qs)}\ns_nop 0\nv_cndmask_b32 v20, v15, v19, vcc\nv_cndmask_b32 v21, 0, -1, vcc")
        a("v_lshrrev_b32 v12, 4, v1\nv_and_b32 v13, 15, v1\nv_lshlrev_b32 v13, 4, v13\nv_lshl_add_u32 v22, v12, 9, v13")
        a(f"s_lshl_b32 s79, s{sG}, 2\ns_add_u32 s79, s79, s81\ns_mul_i32 s79, s79, 144\ns_lshl_b32 s83, s{sNT}, 1\ns_add_u32 s82, s80, s83\ns_lshl_b32 s82, s82, 1")
        a(f"s_add_u32 s79, s79, s82\ns_add_u32 s79, s79, 112\ns_lshl_b32 s79, s79, 10\ns_add_u32 s79, s79, {A_BASE}")
        return L

    def q_rounds(self, qt, uK, uV, KP, VP, consts, wrs):
        a = self.a; grpB = qt >> 1
        WF = lambda i, db: 208 + 8 * (i % 3) + 4 * db
        HF = lambda i: 232 + 4 * (i % 3)
        wv = lambda *t: (lambda: self.wait_vm(*t))
        wl = lambda t: (lambda: self.wait_lg(t))
        st = lambda nm: (lambda: self.stamp(nm))
        def xr(tb, s): self.lgop(f"ds_read_b128 {vr(32+4*(14*tb+s),4)}, v{8+(s&1)} offset:{128*(s>>1)+14336*tb}", f"xf{s}")
        a(f"L_Q{qt}:")
        halo = {0: (qt if qt < 2 else None), 1: (qt - 2 if qt >= 2 else None), 2: None}
        def rd(i):
            rnd, s = divmod(i, 14)
            if i < 2: xr(0, i); xr(1, i)
            b0 = 24 if rnd == 1 else 26
            so = s if rnd == 1 else (s + 6) % 14
            for db in range(2):
                for q in range(2):
                    self.lgop(f"ds_read_b64_tr_b16 {vr(WF(i,db)+2*q,2)}, v{b0+db} offset:{4096*so+512*q}", f"w{i}")
            if halo[rnd] is not None:
                self.lgop(f"ds_read_b128 {vr(HF(i),4)}, v{10+(s&1)} offset:{128*(s>>1)}", f"w{i}")
        def mf(rnd, acc, w, x, first):
            aa, bb = (x, w) if rnd == 1 else (w, x)
            a(f"v_mfma_f32_16x16x32_bf16 {vr(acc,4)}, {vr(aa,4)}, {vr(bb,4)}, {'0' if first else vr(acc,4)}")
        def mm(i):
            rnd, s = divmod(i, 14)
            if s == 0 and rnd > 0: pack(rnd - 1)
            self.wait_lg(f"w{i}", f"xf{i}")
            for tb in range(2):
                for db in range(2):
                    mf(rnd, 144 + 8 * tb + 4 * db, WF(i, db), 32 + 4 * (14 * tb + s), s == 0)
            if halo[rnd] is not None: mf(rnd, 160, WF(i, halo[rnd]), HF(i), s == 0)
        def pack(rnd):
            if rnd == 0:
                for tb in range(2):
                    for k in range(4): a(f"v_cvt_pk_bf16_f32 v{KP+4*(tb+1)+k}, v{144+8*tb+2*k}, v{144+8*tb+2*k+1}")
                self.lgop(f"ds_write_b128 v29, {vr(KP+8,4)}", "xw")
            else:
                for tb in range(2):
                    for db in range(2):
                        for k in range(2):
                            r = 144 + 8 * tb + 4 * db + 2 * k
                            a(f"v_cvt_pk_bf16_f32 v{VP+6*db+2+2*tb+k}, v{r}, v{r+1}")
                for db in range(2): self.lgop(f"ds_write_b64 v29, {vr(VP+6*db+4,2)} offset:{1024+8*db}", "xw")
            if halo[rnd] is not None:
                a("v_cvt_pk_bf16_f32 v248, v160, v161\nv_cvt_pk_bf16_f32 v249, v162, v163")
                self.lgop(f"ds_write_b64 v18, v[248:249] offset:{1024*rnd+8*halo[rnd]}", "xw")
        ev = {}; fi = {}
        E = lambda i, *x: ev.setdefault(i, []).extend(x)
        for i in range(3): fi[i] = [lambda tb=tb, s=s: xr(tb, s) for s in range(2 + 4 * i, 6 + 4 * i) for tb in range(2)]
        mine = lambda lo, hi: range(lo + grpB, hi, 2)
        E(4, wl("xf13"), self.bar, st("m0"))
        if not grpB:
            fi.setdefault(4, []).extend(wrs[:4]); fi.setdefault(5, []).extend(wrs[4:6]); self.spread(fi, wrs[6:], 6, 11)
        else:
            self.spread(fi, [uV(u, "cV") for u in range(5, 14)], 4, 9)
        E(6, wl("cL"), self.bar, st("m1"))
        E(11, wv("cV"), wl("cV"), self.bar, st("m2"))
        self.spread(fi, ([lambda: self.cert_load(f"Q{qt}")] if qt == 0 else []) + [uK(0, u, "Q0") for u in mine(0, 8)], 11, 14)
        E(14, self.bar, st("m3"))
        self.spread(fi, [uK(0, u, "Q1") for u in mine(8, 14)], 14, 18)
        fi.setdefault(27, []).append(self.f_touchB())
        E(25, wv("Q0", "#cert"), *([lambda: self.cert_check(f"Q{qt}")] if qt == 0 else []), self.bar, st("m4"))
        def xread():
            self.lgop(f"ds_read_b128 {vr(KP,4)}, v28", "xk")
            for db in range(2): self.lgop(f"ds_read_b64 {vr(VP+6*db,2)}, v28 offset:{1024+8*db}", "xk")
        E(29, wv("Q1"), wl("xw"), self.bar, st("m5"), xread)
        self.spread(fi, [self.f_b(1, s, grpB, "BE") for s in range(8)], 29, 42)
        self.spread(fi, consts, 12, 25)
        self.pipeline(42, 2, rd, mm, ev, fi)
        self.stamp("m6")

    def finish_q(self, qt, KP, VP, QP, MC, MP, MP0, PM):
        a = self.a
        for tb in range(2):
            for db in range(2):
                for k in range(4):
                    r = 144 + 8 * tb + 4 * db + k
                    a(f"v_mul_f32 v{r}, v{19+db}, v{r}")
            for k in range(4): a(f"v_cvt_pk_bf16_f32 v{QP+4*tb+k}, v{144+8*tb+2*k}, v{144+8*tb+2*k+1}")
        self.lg0()
        for tb in range(2):
            a(f"v_mfma_f32_16x16x32_bf16 {vr(144+8*tb,4)}, {vr(KP+4*tb,4)}, {vr(QP+4*tb,4)}, {vr(MP0 if tb==0 else MP,4)}")
            a(f"v_mfma_f32_16x16x32_bf16 {vr(148+8*tb,4)}, {vr(KP+4*tb+4,4)}, {vr(QP+4*tb,4)}, {vr(MC,4)}")
        E_ = 208
        both = lambda f: [a(f(tb, 144 + 8 * tb, E_ + 4 * tb)) for tb in range(2)]
        both(lambda tb, s, e: f"v_max3_f32 v{e}, v{s}, v{s+1}, v{s+4}")
        both(lambda tb, s, e: f"v_max3_f32 v{e+1}, v{s+2}, v{s+3}, v{s+6}")
        both(lambda tb, s, e: f"v_max_f32 v{e}, v{e}, v{s+5}")
        both(lambda tb, s, e: f"v_max_f32 v{e+1}, v{e+1}, v{s+7}")
        both(lambda tb, s, e: f"v_max_f32 v{e+2}, v{e}, v{e+1}")
        for sw in ("16", "32"):
            both(lambda tb, s, e: f"v_mov_b32 v{e+3}, v{e+2}")
            both(lambda tb, s, e: f"v_permlane{sw}_swap_b32 v{e+2}, v{e+3}")
            both(lambda tb, s, e: f"v_max_f32 v{e+2}, v{e+2}, v{e+3}")
        both(lambda tb, s, e: f"v_sub_f32 v{e}, v{e}, v{e+2}")
        both(lambda tb, s, e: f"v_sub_f32 v{e+1}, v{e+1}, v{e+2}")
        both(lambda tb, s, e: f"v_exp_f32 v{e}, v{e}")
        both(lambda tb, s, e: f"v_exp_f32 v{e+1}, v{e+1}")
        both(lambda tb, s, e: f"v_add_f32 v{e+2}, v{e}, v{e+1}")
        for sw in ("16", "32"):
            both(lambda tb, s, e: f"v_mov_b32 v{e+3}, v{e+2}")
            both(lambda tb, s, e: f"v_permlane{sw}_swap_b32 v{e+2}, v{e+3}")
            both(lambda tb, s, e: f"v_add_f32 v{e+2}, v{e+2}, v{e+3}")
        both(lambda tb, s, e: f"v_rcp_f32 v{e+2}, v{e+2}")
        both(lambda tb, s, e: f"v_mul_f32 v{e}, v{e}, v{e+2}")
        both(lambda tb, s, e: f"v_mul_f32 v{e+1}, v{e+1}, v{e+2}")
        both(lambda tb, s, e: f"v_cvt_pk_bf16_f32 v{e}, v{e}, v{e}")
        both(lambda tb, s, e: f"v_cvt_pk_bf16_f32 v{e+1}, v{e+1}, v{e+1}")
        P = 216
        for k in range(4): both(lambda tb, s, e: f"v_and_b32 v{P+4*tb+k}, v{PM+k}, v{e+(k&1)}")
        for tb in range(2):
            for db in range(2):
                a(f"v_mfma_f32_16x16x32_bf16 {vr(144+8*tb+4*db,4)}, {vr(VP+6*db+2*tb,4)}, {vr(P+4*tb,4)}, 0")
        for tb in range(2):
            O = 224 + 4 * tb
            for k in range(4): a(f"v_cvt_pk_bf16_f32 v{O+k}, v{144+8*tb+2*k}, v{144+8*tb+2*k+1}")
            a(f"v_and_b32 v{O+2}, v21, v{O+2}\nv_and_b32 v{O+3}, v21, v{O+3}")
            self.vmop(f"buffer_store_dwordx4 {vr(O,4)}, v22, {srd(sWS)}, s79 offen offset:{256*tb} sc1", "st")
        self.finish1(range(8, 16), qt >> 1, [("s79", 0)])

    def finish1(self, late, half, tl):
        a = self.a
        self.stamp("p1end")
        a(f"s_lshl_b32 s72, s{sG}, 12\ns_lshl_b32 s73, s{sTYPE}, 8\ns_add_u32 s72, s72, s73\ns_lshl_b32 s73, s{sNT}, 5\ns_add_u32 s72, s72, s73")
        a(f"s_lshl_b32 s73, s{sWAVE}, 2\ns_add_u32 s72, s72, s73\ns_add_u32 s72, s72, {FLAG_BASE}\nv_mov_b32 v16, 1\nv_mov_b32 v17, 0")
        def flag():
            a("s_mov_b64 exec, 1")
            self.wait_vm("st")
            self.vmop(f"buffer_store_dword v16, v17, {srd(sWS)}, s72 offen sc1", "fl")
            a("s_mov_b64 exec, -1")
            self.stamp("flag")
        early = self.on("flagfirst")
        if early: flag()
        self.wait_vm("BE"); self.bar()
        self.stamp("z")
        late = list(late)
        for s in late[:3]: self.f_b(1, s, half, "BL")()
        if not early: flag()
        for s in late[3:]: self.f_b(1, s, half, "BL")()
        for s in range(16, 20): self.f_b(2, s, half, "B2")()
        a("s_mov_b64 exec, 0xffff")
        for k in range(2):
            sbase, add = tl[k % len(tl)]
            a(f"s_add_u32 s75, {sbase}, {add}")
            if self.on("touchA"): self.vmop(f"buffer_load_dword v4, v255, {srd(sWS)}, s75 offen sc1", "ta")
        a("s_mov_b64 exec, -1\ns_branch L_P2")

    def phase2(self):
        a = self.a
        sMH, sAB = 76, 77
        a("L_P2:")
        a(f"s_and_b32 s{sMH}, s{sWAVE}, 1")
        a("v_lshrrev_b32 v12, 5, v1\nv_bfe_u32 v13, v1, 2, 2\nv_lshl_add_u32 v14, v12, 2, v13")
        a("v_bfe_u32 v15, v1, 4, 1\nv_lshlrev_b32 v15, 1, v15\nv_bfe_u32 v12, v1, 1, 1\nv_or_b32 v15, v15, v12")
        a("v_lshrrev_b32 v13, 1, v13\nv_lshlrev_b32 v13, 2, v13\nv_xor_b32 v15, v15, v13\nv_lshlrev_b32 v15, 4, v15")
        a("v_and_b32 v12, 1, v1\nv_lshl_or_b32 v15, v12, 3, v15\nv_lshl_add_u32 v5, v14, 7, v15\nv_xor_b32 v8, 64, v5")
        a("v_add_u32 v6, 0x10000, v5\nv_add_u32 v7, 0x20000, v5\nv_add_u32 v9, 0x10000, v8\nv_add_u32 v10, 0x20000, v8")
        a(f"s_lshl_b32 s70, s{sM2}, 1\ns_add_u32 s70, s70, s{sMH}\ns_mul_i32 s{sAB}, s70, {144*1024}\ns_add_u32 s{sAB}, s{sAB}, {A_BASE}")
        a(f"s_lshl_b32 s70, s70, 5\nv_and_b32 v12, 31, v1\nv_add_u32 v12, s70, v12\nv_mul_u32_u24 v3, 896, v12\nv_lshrrev_b32 v12, 5, v1\nv_lshlrev_b32 v12, 4, v12")
        a(f"v_add3_u32 v3, v3, v12, s{sN2B}")
        a(f"s_cmp_ge_u32 s{sWAVE}, 6\ns_cbranch_scc1 L_P2_2\ns_cmp_ge_u32 s{sWAVE}, 4\ns_cbranch_scc1 L_P2_3\ns_cmp_ge_u32 s{sWAVE}, 2\ns_cbranch_scc1 L_P2_1")
        ACC, BR, AF, BF = 96, 128, 32, 16
        RING0 = int(self.opt.get("ring0", 6)); RSTEP = int(self.opt.get("rstep", 2))
        for p in range(4):
            half = p >> 1
            self.vm = ["BL"] + ["B2"] * 4 + (["ta"] * 2 if self.on("touchA") else []); self.lg = []
            a(f"L_P2_{p}:")
            def baddr(slot, sl, nb, q):
                loc = (sl * 2048 + q * 1024) if p < 3 else (28 * (sl >> 1) + 8 * (sl & 1) + 16 * q) * 128
                off = slot * SLOT + loc
                return 5 + 3 * nb + (off >> 16), off & 0xffff
            def b1regs(cs):
                for c in cs:
                    for sl in range(4):
                        for nb in range(2):
                            for q in range(2):
                                vb, imm = baddr(b1_slot(p, c), sl, nb, q)
                                a(f"ds_read_b64_tr_b16 {vr(BR+8*(4*c+sl)+4*nb+2*q,2)}, v{vb} offset:{imm}")
            if p == 0:
                a(f"s_min_u32 s70, s{sN2B}, 768\ns_load_dwordx16 s[4:19], s[{sB2P}:{sB2P+1}], s70\ns_add_u32 s70, s70, 64")
            b1regs([0, 1])
            if p == 0:
                a("v_mov_b32 v29, 0xffff0000\ns_mov_b32 s82, 0\ns_mov_b32 s83, -1\ns_waitcnt lgkmcnt(0)")
                self.unpack_bias(4, ACC)
                a(f"s_load_dwordx16 s[4:19], s[{sB2P}:{sB2P+1}], s70")
            self.vmop(f"buffer_load_dwordx4 v[12:15], v3, {srd(sX)}, 0 offen offset:{32*p}", "xr")
            self.lg0(); self.bar()
            a(f"s_cmp_ge_u32 s{sN2B}, 896\ns_cbranch_scc1 L_FIN")
            for s in range(0, 8): self.f_b(2, s, half, "B2")()
            self.wait_vm("BL"); self.bar()
            self.stamp("y")
            b1regs([2, 3])
            if p == 0: self.unpack_bias(4, ACC + 16)
            self.lg0(); self.bar()
            self.stamp("v")
            def last():
                if half == 0:
                    for s in range(8, 16):
                        for h in range(2): self.f_b(2, s, h, "B2")()
            if p == 0:
                a(f"s_cmp_lg_u32 s{sWAVE}, 0\ns_cbranch_scc1 L_np\ns_mov_b32 s71, 0\ns_lshr_b32 s72, s{sM2}, 1\ns_lshl_b32 s72, s72, 12\ns_add_u32 s72, s72, {FLAG_BASE}\nv_lshlrev_b32 v11, 3, v1")
                a(f"L_poll:\nbuffer_load_dwordx2 v[16:17], v11, {srd(sWS)}, s72 offen sc1\ns_waitcnt vmcnt(0)\nv_and_b32 v16, v16, v17\nv_cmp_ne_u32 vcc, 1, v16\ns_nop 1\ns_cbranch_vccz L_got")
                a("s_add_u32 s71, s71, 1\ns_cmp_ge_u32 s71, 0x40000\ns_cbranch_scc1 L_got\ns_sleep 1\ns_branch L_poll\nL_got:")
                self.stamp("got")
                self.bar()
                vsave = list(self.vm)
                last()
                a("s_branch L_u\nL_np:")
                self.vm = vsave
            last()
            if half: self.wait_vm("B2")
            self.bar()
            if p == 0: a("L_u:")
            if half: self.bar()
            self.stamp("poll")
            nL = P_NL[p]; nst = nL + 16
            order = [("r", k) for k in range(16)] + [("l", k) for k in range(nL)]
            gstep = lambda o: P_FIRST[p] + (o[1] if o[0] == "l" else nL + o[1])
            areg = {}; free = [AF + 4 * k for k in range(16)]; nxt = [0]
            def lda():
                n = nxt[0]
                if n >= nst or not free: return
                areg[n] = free.pop(0); nxt[0] += 1
                a(f"s_add_u32 s74, s{sAB}, {gstep(order[n])*1024}")
                self.vmop(f"buffer_load_dwordx4 {vr(areg[n],4)}, v2, {srd(sWS)}, s74 offen sc1", f"a{n}")
            def rdb(n):
                if order[n][0] != "l": return
                k = order[n][1]
                for nb in range(2):
                    for q in range(2):
                        vb, imm = baddr(B2_SLOT[(p, k // 4)], k % 4, nb, q)
                        self.lgop(f"ds_read_b64_tr_b16 {vr(BF+8*(n&1)+4*nb+2*q,2)}, v{vb} offset:{imm}", f"b{n}")
            for n in range(RING0): lda()
            for n in range(nst):
                if n == 0: self.stamp("iss")
                self.wait_vm(f"a{n}"); self.wait_lg(f"b{n}")
                self.stamp(f"n{n}")
                for nb in range(2):
                    w = BF + 8 * (n & 1) + 4 * nb if order[n][0] == "l" else BR + 8 * order[n][1] + 4 * nb
                    c = "0" if (n == 0 and p != 0) else vr(ACC + 16 * nb, 16)
                    a(f"v_mfma_f32_32x32x16_bf16 {vr(ACC+16*nb,16)}, {vr(w,4)}, {vr(areg[n],4)}, {c}")
                if n == 0 and half == 0: self.bar()
                if n + 2 < nst: rdb(n + 2)
                free.append(areg[n])
                if order[n][0] == "r": free.extend([BR + 8 * order[n][1], BR + 8 * order[n][1] + 4])
                for _ in range(RSTEP): lda()
                if n == [39, 35, 29, 28][p]: self.bar()
            self.stamp("mm")
            a(f"s_lshl_b32 s70, s{sMH}, 15\nv_add_u32 v8, s70, v2")
            a("v_permlane32_swap_b32 v12, v14\nv_permlane32_swap_b32 v13, v15")
            X = 64
            for j in range(4): a(f"v_lshlrev_b32 v{X+2*j}, 16, v{12+j}\nv_and_b32 v{X+2*j+1}, 0xffff0000, v{12+j}")
            for d in range(4):
                if d == p: continue
                for j in range(2): a(f"ds_write_b128 v8, {vr(ACC+8*d+4*j,4)} offset:{(d*4+p)*2048+1024*j}")
            self.lg0(); self.bar()
            R = {}; k = 0
            for src in range(4):
                if src == p: R[src] = ACC + 8 * p; continue
                R[src] = 32 + 8 * k; k += 1
                for j in range(2): a(f"ds_read_b128 {vr(R[src]+4*j,4)}, v8 offset:{(p*4+src)*2048+1024*j}")
            self.lg0()
            T, U = 72, 80
            for k in range(8): a(f"v_add_f32 v{T+k}, v{R[0]+k}, v{R[1]+k}")
            for k in range(8): a(f"v_add_f32 v{T+k}, v{T+k}, v{R[2]+k}")
            for k in range(8): a(f"v_mul_f32 v{U+k}, {hx(-LOG2E)}, v{T+k}")
            for k in range(8): a(f"v_exp_f32 v{U+k}, v{U+k}")
            for k in range(8): a(f"v_mul_f32 v{T+k}, v{T+k}, v{R[3]+k}")
            for k in range(8): a(f"v_add_f32 v{U+k}, 1.0, v{U+k}")
            for k in range(8): a(f"v_rcp_f32 v{U+k}, v{U+k}")
            for k in range(8): a(f"v_fmac_f32 v{X+k}, v{T+k}, v{U+k}")
            for k in range(4): a(f"v_cvt_pk_bf16_f32 v{88+k}, v{X+2*k}, v{X+2*k+1}")
            a("v_permlane32_swap_b32 v88, v90\nv_permlane32_swap_b32 v89, v91")
            a(f"buffer_store_dwordx4 v[88:91], v3, {srd(sOUT)}, 0 offen offset:{32*p}")
            if p < 3: a("s_branch L_FIN")

    def write_stamps(self):
        if not self.stamps: return
        a = self.a
        a("s_waitcnt vmcnt(0)\ns_memrealtime s[100:101]\ns_waitcnt lgkmcnt(0)")
        a(f"s_lshl_b32 s70, s2, 3\ns_add_u32 s70, s70, s{sWAVE}\ns_lshl_b32 s70, s70, 6\nv_mov_b32 v40, s70")
        for k in range(8): a(f"v_mov_b32 v{32+k}, s{84+2*k}")
        a("v_mov_b32 v44, s100\nv_mov_b32 v45, 0\nv_mov_b32 v46, 0\nv_mov_b32 v47, 0\ns_mov_b64 exec, 1")
        a(f"buffer_store_dwordx4 v[32:35], v40, {srd(sWS)}, 0 offen\nbuffer_store_dwordx4 v[36:39], v40, {srd(sWS)}, 0 offen offset:16\nbuffer_store_dwordx4 v[44:47], v40, {srd(sWS)}, 0 offen offset:32")

    def build(self, verbose=False):
        a = self.a
        self.prologue(); self.vm0 = list(self.vm)
        a(f"s_cmp_ge_u32 s{sWAVE}, 4\ns_cbranch_scc1 L_B\ns_cmp_eq_u32 s{sTYPE}, 1\ns_cbranch_scc1 L_QA\ns_branch L_HA\nL_B:\ns_cmp_eq_u32 s{sTYPE}, 1\ns_cbranch_scc1 L_QB\ns_branch L_HB")
        self.type_h(False); self.type_h(True); self.type_q(); self.phase2()
        a("L_FIN:"); self.write_stamps(); a("L_END:\ns_endpgm")
        a.fix_hazards(verbose)
        name = BASE + "_kernel"
        s = "; @launch grid=(256,1,1) block=(512,1,1) lds=163840\n"
        s += '.amdgcn_target "amdgcn-amd-amdhsa--gfx950"\n.text\n'
        s += f".globl {name}\n.p2align 8\n.type {name},@function\n{name}:\n" + a.text()
        s += f""".section .rodata,"a"
.p2align 6
.amdhsa_kernel {name}
  .amdhsa_next_free_vgpr 256
  .amdhsa_next_free_sgpr 102
  .amdhsa_accum_offset 256
  .amdhsa_group_segment_fixed_size 0
  .amdhsa_kernarg_size 88
  .amdhsa_user_sgpr_count 2
  .amdhsa_user_sgpr_kernarg_segment_ptr 1
  .amdhsa_system_sgpr_workgroup_id_x 1
.end_amdhsa_kernel
"""
        return s

if __name__ == "__main__":
    out = sys.argv[1]
    st = sys.argv[2].split(",") if len(sys.argv) > 2 and sys.argv[2] != "-" else None
    opt = {}
    for k in os.environ.get("OPT", "").split(","):
        if "=" in k: kk, vv = k.split("="); opt[kk] = vv
        elif k: opt[k] = True
    open(out, "w").write(Gen(st, opt).build(verbose=len(sys.argv) > 3))
```

```python
import sys, struct, math, os
sys.path.insert(0, "gen")
from asmlib import Asm

BASE = "recurrent_scan__sliding_local_dilated__mixer_channel_mlp__prompt"
f2u = lambda x: struct.unpack("<I", struct.pack("<f", x))[0]
hx = lambda x: "0x%08x" % f2u(x)

A_BASE = 0x100000
FLAG_BASE = 0x40000
LOG2E = 1.4426950408889634
NEG = -1.0e30
SLOT = 8192

sX, sWA, sWS, sDBG, sW2, sWO, sOUT = 28, 32, 36, 40, 44, 48, 52
sB2P = 58
sWAVE, sG, sNT, sTYPE, sM2, sN2B, sW1K = 60, 61, 62, 63, 64, 65, 66
sONES, sC2, sI = 67, 68, 69
vB, vT, vCA, vC = 31, 254, 23, 30
srd = lambda b: f"s[{b}:{b+3}]"
vr = lambda b, n: f"v[{b}:{b+n-1}]" if n > 1 else f"v{b}"

P_FIRST = [0, 40, 76, 112]; P_NL = [24, 20, 20, 16]
def b1_src(p, c): return (sWO, 224 + 56 * c) if p == 3 else (sW2, 16 * (P_FIRST[p] + P_NL[p]) + 64 * c)
def b2_src(p, c): return (sWO, 56 * c) if p == 3 else (sW2, 16 * P_FIRST[p] + 64 * c)
def b1_slot(p, c): return 2 * p + c if c < 2 else 8 + 2 * p + (c - 2)
B2_SLOT = {}
for _p in range(4):
    B2_SLOT[(_p, 0)] = 16 + _p; B2_SLOT[(_p, 1)] = 2 * _p; B2_SLOT[(_p, 2)] = 2 * _p + 1; B2_SLOT[(_p, 3)] = 8 + _p
B2_SLOT[(0, 4)] = 12; B2_SLOT[(1, 4)] = 13; B2_SLOT[(2, 4)] = 14; B2_SLOT[(0, 5)] = 15
B1_BY_SLOT = {b1_slot(p, c): (p, c) for p in range(4) for c in range(4)}
B2_BY_SLOT = {v: k for k, v in B2_SLOT.items()}

class Gen:
    def __init__(self, stamps=None, opt=None):
        self.a = Asm(); self.stamps = stamps; self.opt = opt or {}
        self.vm = []; self.lg = []
    def on(self, k): return bool(self.opt.get(k)) if k == "touchA" else not self.opt.get("no_" + k)
    def vmop(self, text, tag): self.a(text); self.vm.append(tag)
    def lgop(self, text, tag): self.a(text); self.lg.append(tag)
    def _idx(self, lst, tags): return max([i for i, t in enumerate(lst) if t in tags], default=-1)
    def wait_vm(self, *tags):
        idx = self._idx(self.vm, tags)
        if idx < 0: return
        n = sum(1 for t in self.vm[idx + 1:] if not t.startswith("#"))
        self.a(f"s_waitcnt vmcnt({min(n,63)})"); self.vm = self.vm[idx + 1:]
    def wait_lg(self, *tags):
        idx = self._idx(self.lg, tags)
        if idx < 0: return
        self.a(f"s_waitcnt lgkmcnt({min(len(self.lg)-1-idx,15)})"); self.lg = self.lg[idx + 1:]
    def lg0(self): self.a("s_waitcnt lgkmcnt(0)"); self.lg = []
    def stamp(self, name):
        if self.stamps and name in self.stamps:
            k = self.stamps.index(name); self.a(f"s_memrealtime s[{84+2*k}:{85+2*k}]")
        if self.stamps and "c" + name in self.stamps:
            k = self.stamps.index("c" + name); self.a(f"s_memtime s[{84+2*k}:{85+2*k}]")
    def mksrd(self, d, b, n):
        self.a(f"s_mov_b32 s{d}, s{b}\ns_mov_b32 s{d+1}, s{b+1}\ns_mov_b32 s{d+2}, {n}\ns_mov_b32 s{d+3}, 0x20000")
    def bar(self): self.a("s_barrier")

    def prologue(self):
        a = self.a
        a("s_cmp_ge_u32 s2, 256\ns_cbranch_scc1 L_END")
        self.stamp("start")
        a("s_load_dwordx16 s[4:19], s[0:1], 0\ns_load_dwordx4 s[20:23], s[0:1], 64\ns_load_dwordx2 s[24:25], s[0:1], 80")
        a("v_and_b32 v1, 63, v0\nv_lshrrev_b32 v12, 6, v0\nv_lshlrev_b32 v2, 4, v1")
        a(f"v_readfirstlane_b32 s{sWAVE}, v12")
        a(f"s_and_b32 s70, s2, 7\ns_lshr_b32 s{sI}, s2, 3")
        if not self.opt.get("newmap") and not self.opt.get("midmap"):
            a(f"s_and_b32 s{sG}, s70, 1\ns_lshl_b32 s{sG}, s{sG}, 3\ns_and_b32 s72, s{sI}, 7\ns_add_u32 s{sG}, s{sG}, s72")
            a(f"s_and_b32 s{sNT}, s70, 6\ns_lshr_b32 s72, s{sI}, 4\ns_add_u32 s{sNT}, s{sNT}, s72\ns_bfe_u32 s{sTYPE}, s{sI}, 0x10003")
        elif self.opt.get("midmap"):
            a(f"s_lshr_b32 s{sG}, s70, 1\ns_lshl_b32 s{sG}, s{sG}, 2\ns_and_b32 s72, s{sI}, 3\ns_add_u32 s{sG}, s{sG}, s72")
            a(f"s_and_b32 s{sNT}, s70, 1\ns_lshl_b32 s{sNT}, s{sNT}, 2\ns_lshr_b32 s72, s{sI}, 4\ns_lshl_b32 s72, s72, 1\ns_add_u32 s{sNT}, s{sNT}, s72\ns_bfe_u32 s72, s{sI}, 0x10002\ns_add_u32 s{sNT}, s{sNT}, s72\ns_bfe_u32 s{sTYPE}, s{sI}, 0x10003")
        else:
            a(f"s_lshl_b32 s{sG}, s70, 1\ns_lshr_b32 s72, s{sI}, 4\ns_add_u32 s{sG}, s{sG}, s72")
            a(f"s_and_b32 s{sNT}, s{sI}, 7\ns_bfe_u32 s{sTYPE}, s{sI}, 0x10003")
        a(f"s_lshl_b32 s{sM2}, s70, 2\ns_and_b32 s73, s{sI}, 3\ns_add_u32 s{sM2}, s{sM2}, s73\ns_lshr_b32 s72, s{sI}, 2\ns_lshl_b32 s{sN2B}, s72, 7")
        a(f"s_mov_b32 s{sONES}, 0x3f803f80\ns_and_b32 s{sW1K}, s{sWAVE}, 3\ns_lshl_b32 s{sW1K}, s{sW1K}, 10")
        a(f"v_lshrrev_b32 v3, 3, v0\ns_lshl_b32 s70, s{sWAVE}, 3\nv_add_u32 v3, s70, v3\nv_mul_u32_u24 v3, 896, v3")
        a("v_and_b32 v12, 7, v0\nv_lshl_add_u32 v3, v12, 4, v3")
        a(f"s_mul_i32 s70, s{sG}, {128*896}\ns_add_u32 s71, s70, {8*896}")
        a("s_waitcnt lgkmcnt(0)")
        self.mksrd(sX, 4, 2048 * 896)
        for grp in range(2):
            for j in range(7):
                self.vmop(f"buffer_load_dwordx4 {vr(32+(grp*7+j)*4,4)}, v3, {srd(sX)}, s{70+grp} offen offset:{128*j}", f"x{grp}{j}")
        self.stamp("xiss")

    def common_setup(self):
        a = self.a
        self.mksrd(sWS, 24, 1 << 28); self.mksrd(sDBG, 22, 256); self.mksrd(sW2, 16, 1792 * 896); self.mksrd(sWO, 8, 448 * 896); self.mksrd(sOUT, 20, 2048 * 896)
        a(f"s_mov_b64 s[{sB2P}:{sB2P+1}], s[18:19]")
        a(f"v_lshlrev_b32 v{vCA}, 2, v1\nv_and_b32 v{vCA}, 63, v{vCA}\nv_lshlrev_b32 v255, 7, v1")
        a(f"v_bfe_u32 v12, v0, 3, 5\nv_mul_u32_u24 v{vB}, 896, v12\nv_lshrrev_b32 v13, 2, v1\nv_and_b32 v13, 4, v13\nv_and_b32 v12, 7, v1\nv_xor_b32 v12, v12, v13\nv_lshl_add_u32 v{vB}, v12, 4, v{vB}")

    def f_dma(self, voff, srdb, sbase, add, lds, tag):
        def f():
            self.a(f"s_add_u32 m0, s{sW1K}, {lds}\ns_add_u32 s74, {sbase}, {add}")
            self.vmop(f"buffer_load_dwordx4 v{voff}, {srd(srdb)}, s74 offen lds", tag)
        return f
    def f_b(self, which, slot, half, tag):
        p, c = (B1_BY_SLOT if which == 1 else B2_BY_SLOT)[slot]
        sr, row = (b1_src if which == 1 else b2_src)(p, c)
        return self.f_dma(vB, sr, f"s{sN2B}", (row + 32 * half) * 896, slot * SLOT + 4096 * half, tag)

    def dma_voff(self, stride):
        a = self.a
        a(f"v_bfe_u32 v12, v0, 3, 5\nv_mul_u32_u24 v4, {stride}, v12")
        a(f"v_lshrrev_b32 v13, 2, v1\nv_and_b32 v13, 4, v13\ns_and_b32 s70, s{sWAVE}, 1\ns_lshl_b32 s70, s70, 1\nv_or_b32 v13, s70, v13")
        a("v_and_b32 v12, 7, v1\nv_xor_b32 v12, v12, v13\nv_lshl_add_u32 v4, v12, 4, v4")

    def touches(self, rowbytes):
        if not self.on("touchW"): return
        a = self.a
        n1 = (28 * rowbytes + 8191) // 8192
        a(f"s_lshr_b32 s70, s{sI}, 4\ns_lshl_b32 s71, s{sNT}, 1\ns_add_u32 s70, s70, s71\ns_mul_i32 s70, s70, {28*rowbytes}\ns_lshl_b32 s71, s{sW1K}, 3\ns_add_u32 s70, s70, s71")
        for k in range((n1 + 3) // 4):
            self.vmop(f"buffer_load_dword v{vT}, v255, {srd(sWA)}, s70 offen sc1", "tw"); a("s_add_u32 s70, s70, 32768")
        a(f"s_mul_i32 s70, s{sI}, {56*896}\ns_add_u32 s70, s70, s71")
        for k in range(2):
            self.vmop(f"buffer_load_dword v{vT}, v255, {srd(sW2)}, s70 offen sc1", "tw"); a("s_add_u32 s70, s70, 32768")
        a(f"s_mul_i32 s70, s{sI}, {14*896}\ns_lshr_b32 s71, s71, 1\ns_add_u32 s70, s70, s71")
        self.vmop(f"buffer_load_dword v{vT}, v255, {srd(sWO)}, s70 offen sc1", "tw")

    def f_touchB(self):
        def f():
            if not self.on("touchB"): return
            an = self.a
            an(f"v_mul_u32_u24 v253, 7, v255\ns_and_b32 s75, s{sM2}, 3\ns_lshl_b32 s75, s75, 3\ns_add_u32 s75, s75, s{sWAVE}\ns_lshl_b32 s74, s75, 5")
            an("s_cmp_ge_u32 s75, 12\ns_cselect_b32 s73, 256, 0\ns_add_u32 s74, s74, s73\ns_cmp_ge_u32 s75, 22\ns_cselect_b32 s73, 256, 0\ns_add_u32 s74, s74, s73")
            an(f"s_mul_i32 s74, s74, 896\ns_add_u32 s74, s74, s{sN2B}\ns_mov_b64 exec, 0xffffffff")
            self.vmop(f"buffer_load_dword v{vT}, v253, {srd(sW2)}, s74 offen sc1", "tb")
            an(f"s_mul_i32 s74, s75, {8*896}\ns_add_u32 s74, s74, s{sN2B}\ns_mov_b64 exec, 0xff")
            self.vmop(f"buffer_load_dword v{vT}, v253, {srd(sWO)}, s74 offen sc1", "tb")
            an("s_mov_b64 exec, -1")
        return f

    def f_touchA(self, tag, sbase, add):
        def f():
            if not self.on("touchA"): return
            self.wait_vm(tag)
            self.a(f"s_add_u32 s75, {sbase}, {add}\ns_mov_b64 exec, 0xffff")
            self.vmop(f"buffer_load_dword v{vT}, v255, {srd(sWS)}, s75 offen sc1", "ta")
            self.a("s_mov_b64 exec, -1")
        return f

    def reduce_dpp(self, regs, wide):
        a = self.a
        steps = ["quad_perm:[1,0,3,2]", "quad_perm:[2,3,0,1]", "row_half_mirror"] + (["row_mirror"] if wide else [])
        for st in steps:
            for r in regs: a(f"v_add_f32_dpp v{r}, v{r}, v{r} {st} row_mask:0xf bank_mask:0xf")
        if wide:
            for r in regs: a(f"v_mov_b32 v{r+4}, v{r}")
            for r in regs: a(f"v_permlane16_swap_b32 v{r}, v{r+4}")
            for r in regs: a(f"v_add_f32 v{r}, v{r}, v{r+4}")

    def ln_scale(self, s1, s2, second):
        a = self.a; t = s2 + 1
        a(f"v_mul_f32 v{s1}, {hx(1/448)}, v{s1}\nv_mul_f32 v{s2}, {hx(1/448)}, v{s2}")
        a(f"v_fma_f32 v{s2}, -v{s1}, v{s1}, v{s2}\nv_max_f32 v{s2}, 0, v{s2}")
        a(f"v_add_f32 v{t}, {hx(1e-5)}, v{s2}\nv_rsq_f32 v{t}, v{t}")
        if second:
            a(f"v_mul_f32 v{s2}, v{s2}, v{t}\nv_mul_f32 v{s2}, v{s2}, v{t}\nv_add_f32 v{s2}, {hx(1e-5)}, v{s2}\nv_rsq_f32 v{s2}, v{s2}")
            a(f"v_mul_f32 v{t}, v{t}, v{s2}")
        a(f"v_cvt_pk_bf16_f32 v{t}, v{t}, 0\nv_lshlrev_b32 v{s2}, 16, v{t}")
        a(f"v_mul_f32 v{t+1}, v{s1}, v{s2}\nv_mov_b32 v{s1}, v{t}\nv_sub_f32 v{t}, 0, v{t+1}")

    def stats(self, base, n, s1, s2, tags):
        a = self.a
        a(f"v_mov_b32 v{s1}, 0\nv_mov_b32 v{s2}, 0")
        for j in range(n):
            self.wait_vm(tags[j])
            for k in range(4):
                r = base + 4 * j + k
                a(f"v_dot2c_f32_bf16 v{s1}, s{sONES}, v{r}\nv_dot2c_f32_bf16 v{s2}, v{r}, v{r}")

    def normalize(self, base, clo, chi, nm, tmp):
        a = self.a
        for k in range(4):
            a(f"v_dot2_f32_bf16 v{tmp+2*k}, v{base+k}, v{clo}, v{nm}\nv_dot2_f32_bf16 v{tmp+2*k+1}, v{base+k}, v{chi}, v{nm}")
        for k in range(4):
            a(f"v_cvt_pk_bf16_f32 v{base+k}, v{tmp+2*k}, v{tmp+2*k+1}")

    def ln_main(self, second, qtype, after_st0=()):
        a = self.a
        a(f"v_lshrrev_b32 v12, 3, v1\ns_lshl_b32 s70, s{sWAVE}, 4")
        if qtype: a(f"s_and_b32 s71, s{sWAVE}, 4\ns_lshl_b32 s71, s71, 2\ns_add_u32 s70, s70, s71")
        a("v_add_u32 v12, s70, v12\nv_mul_u32_u24 v12, 896, v12")
        a("v_lshrrev_b32 v13, 4, v1\nv_and_b32 v14, 7, v1\nv_xor_b32 v13, v13, v14")
        a(f"v_lshl_add_u32 v6, v13, 4, v12\nv_xor_b32 v13, 4, v13\nv_lshl_add_u32 v7, v13, 4, v12\nv_add_u32 v7, {8*896}, v7")
        self.stamp("setup")
        S = [(104, 105), (112, 113)]
        for grp in range(2):
            s1, s2 = S[grp]
            self.stats(32 + grp * 28, 7, s1, s2, [f"x{grp}{j}" for j in range(7)])
            self.stamp(f"st{grp}")
            if grp == 0:
                for f in after_st0: f()
            self.reduce_dpp([s1, s2], False)
            self.ln_scale(s1, s2, second)
            for j in range(7):
                b = 32 + (grp * 7 + j) * 4
                self.normalize(b, s1, s2, s2 + 1, 96)
                a(f"ds_write_b128 v{6+grp}, {vr(b,4)} offset:{128*j}")
        self.stamp("lnend")

    def f_ld(self, dst, voff, sbase, add, tag):
        def f():
            self.a(f"s_add_u32 s74, {sbase}, {add}")
            self.vmop(f"buffer_load_dwordx4 {vr(dst,4)}, v{voff}, {srd(sWA)}, s74 offen", tag)
        return f
    def f_wr(self, src, lds, tag, wtag):
        def f():
            self.wait_vm(tag)
            self.lgop(f"ds_write_b128 v{self.vwr + (lds >> 16)}, {vr(src,4)} offset:{lds & 0xffff}", wtag)
        return f

    def cert_load(self, L):
        self.a(f"s_cmp_lg_u32 s{sWAVE}, 0\ns_cbranch_scc1 L_nc{L}\nbuffer_load_dword v{vC}, v{vCA}, {srd(sDBG)}, 0 offen offset:64 sc1\nL_nc{L}:")
        self.vm.append("#cert")
    def cert_check(self, L):
        a = self.a
        a(f"s_cmp_lg_u32 s{sWAVE}, 0\ns_cbranch_scc1 L_cok{L}\ns_mov_b32 s71, 0")
        a(f"L_cert{L}:\nv_cmp_eq_u32 vcc, 0, v{vC}\ns_nop 1\ns_cbranch_vccz L_cok{L}")
        a(f"s_add_u32 s71, s71, 1\ns_cmp_ge_u32 s71, 0x40000\ns_cbranch_scc1 L_cok{L}\ns_sleep 2\nbuffer_load_dword v{vC}, v{vCA}, {srd(sDBG)}, 0 offen offset:64 sc1\ns_waitcnt vmcnt(0)\ns_branch L_cert{L}\nL_cok{L}:")

    def unpack_bias(self, sb, acc):
        a = self.a
        for hh in range(2):
            if hh: a("s_mov_b64 exec, s[82:83]")
            for j in range(4):
                for k in range(2):
                    s = sb + 4 * j + 2 * hh + k
                    a(f"v_lshlrev_b32 v{acc+4*j+2*k}, 16, s{s}\nv_and_b32 v{acc+4*j+2*k+1}, s{s}, v29")
        a("s_mov_b64 exec, -1")

    def pipeline(self, n, depth, rd, mm, events, fillers):
        nxt = 0; hold = False
        while nxt < min(depth, n): rd(nxt); nxt += 1
        for i in range(n):
            while nxt <= i: rd(nxt); nxt += 1
            mm(i)
            for e in events.get(i, []):
                if e == "hold": hold = True
                elif e == "go": hold = False
                else: e()
            while not hold and nxt < min(i + 1 + depth, n): rd(nxt); nxt += 1
            for f in fillers.get(i, []): f()

    @staticmethod
    def spread(fillers, items, lo, hi):
        n = hi - lo
        for k, it in enumerate(items):
            fillers.setdefault(lo + k * n // len(items), []).append(it)

    def gelu_items(self, acc, sbase, add, tag):
        a = self.a; L = []
        I = lambda s: L.append(lambda s=s: a(s))
        T = lambda k: (232, 233, 234, 235, 236, 237, 238, 239, 248, 249)[k % 10]
        stage = [
            lambda k: f"v_mul_f32 v{T(k)}, v{acc+k}, v{acc+k}",
            lambda k: f"v_fma_f32 v{T(k)}, v{T(k)}, s{sC2}, v27",
            lambda k: f"v_mul_f32 v{T(k)}, v{T(k)}, v{acc+k}",
            lambda k: f"v_exp_f32 v{T(k)}, v{T(k)}",
            lambda k: f"v_add_f32 v{T(k)}, 1.0, v{T(k)}",
            lambda k: f"v_rcp_f32 v{T(k)}, v{T(k)}",
            lambda k: f"v_mul_f32 v{T(k)}, v{acc+k}, v{T(k)}",
        ]
        for t in range(16 + 7):
            k = t - 7
            if 0 <= k < 16 and k & 1:
                I(f"v_cvt_pk_bf16_f32 v{240+(k>>1)}, v{T(k-1)}, v{T(k)}")
                if k & 7 == 7:
                    def st(h=k >> 3):
                        a(f"s_add_u32 s75, {sbase}, {add*32+1024*h}")
                        self.vmop(f"buffer_store_dwordx4 {vr(240+4*h,4)}, v2, {srd(sWS)}, s75 offen sc1", tag)
                    L.append(st)
            for sg in (6, 3, 4, 2, 5, 1, 0):
                k = t - sg
                if 0 <= k < 16: I(stage[sg](k))
        return L

    def type_h(self, grpB):
        a = self.a; L = "HB" if grpB else "HA"
        RD, R1 = 106496, 49152
        RU = 32 * 3584
        self.vm = list(self.vm0); self.lg = []
        a(f"L_{L}:")
        self.mksrd(sWA, 12, 448 * 3584); self.mksrd(4, 14, 3584)
        a(f"s_lshr_b32 s70, s{sNT}, 1\ns_mul_i32 s70, s70, 896\ns_and_b32 s71, s{sNT}, 1\ns_lshl_b32 s76, s71, 9\ns_add_u32 s76, s76, s70")
        a("s_lshl_b32 s77, s71, 6\ns_add_u32 s77, s77, s70\ns_add_u32 s77, s77, 384")
        if grpB: blocks = [("s76", 0), ("s76", 128), ("s76", 256)]
        else: blocks = [("s76", 64), ("s77", 0), ("s76", 192), ("s76", 320)]
        self.dma_voff(3584)
        rot = lambda u: RD + ((u + 2) % 14) * 4096
        uD = lambda col, u, tag: self.f_dma(4, sWA, "s76", col + u * RU, rot(u), tag)
        a("v_and_b32 v29, 31, v1\nv_lshlrev_b32 v29, 1, v29")
        def bias():
            for b, (sb, off) in enumerate(blocks):
                self.vmop(f"buffer_load_ushort v{184+2*b}, v29, s[4:7], {sb} offen offset:{off}", "bias")
        if grpB:
            for u in range(4): uD(0, u, "E0")()
            bias()
        self.common_setup()
        if grpB:
            a(f"s_lshl_b32 s78, s{sNT}, 3\ns_add_u32 s78, s78, s{sWAVE}\ns_cmp_lg_u32 s78, 7\ns_cbranch_scc1 L_nolead1")
            a(f"s_lshl_b32 s70, s{sG}, 12\ns_add_u32 s70, s70, {FLAG_BASE}\nv_lshlrev_b32 v12, 3, v1\nv_mov_b32 v14, 0\nv_mov_b32 v15, 0")
            a(f"buffer_store_dwordx2 v[14:15], v12, {srd(sWS)}, s70 offen sc1\nL_nolead1:")
        a(f"v_bfe_u32 v12, v0, 2, 6\nv_mul_u32_u24 v5, 3584, v12\nv_and_b32 v12, 3, v1\nv_lshl_add_u32 v5, v12, 4, v5")
        c1 = -2.0 * math.sqrt(2.0 / math.pi) * LOG2E
        a(f"v_mov_b32 v27, {hx(c1)}\ns_mov_b32 s{sC2}, {hx(c1*0.044715)}")
        a("v_cmp_gt_u32 vcc, 32, v1\nv_mov_b32 v12, 0x3f80\nv_mov_b32 v177, 0\nv_cndmask_b32 v176, 0, v12, vcc\nv_mov_b32 v178, 0\nv_mov_b32 v179, 0")
        for r in (185, 187, 189, 191, 192, 193): a(f"v_mov_b32 v{r}, 0")
        if grpB: a("v_mov_b32 v190, 0")
        a(f"v_and_b32 v12, 31, v1\ns_and_b32 s70, s{sWAVE}, 3\ns_lshl_b32 s70, s70, 5\nv_add_u32 v13, s70, v12\nv_mul_u32_u24 v13, 896, v13")
        a("v_bfe_u32 v12, v1, 1, 3\nv_lshrrev_b32 v14, 5, v1\nv_xor_b32 v12, v12, v14")
        for i in range(4):
            a(f"v_xor_b32 v14, {2*i}, v12\nv_lshl_add_u32 v{8+i}, v14, 4, v13")
        a("v_lshrrev_b32 v12, 5, v1\nv_bfe_u32 v13, v1, 2, 2\nv_lshl_add_u32 v14, v12, 3, v13")
        a("v_bfe_u32 v15, v1, 4, 1\nv_lshlrev_b32 v15, 1, v15\nv_bfe_u32 v16, v1, 1, 1\nv_or_b32 v15, v15, v16")
        a("v_lshrrev_b32 v16, 1, v13\nv_lshlrev_b32 v16, 2, v16\nv_lshl_or_b32 v16, v12, 1, v16")
        a(f"v_xor_b32 v16, v15, v16\nv_xor_b32 v16, {0 if grpB else 4}, v16\nv_lshlrev_b32 v16, 4, v16")
        a("v_and_b32 v17, 1, v1\nv_lshl_or_b32 v16, v17, 3, v16\nv_lshl_add_u32 v24, v14, 7, v16")
        a(f"v_add_u32 v25, {R1}, v24\nv_add_u32 v24, {RD}, v24")
        a(f"v_lshlrev_b32 v15, 4, v15\nv_lshl_or_b32 v15, v17, 3, v15\nv_lshl_add_u32 v26, v14, 6, v15")
        a(f"s_and_b32 s70, s{sWAVE}, 3\ns_lshl_b32 s71, s{sG}, 2\ns_add_u32 s71, s71, s70\ns_mul_i32 s71, s71, {144*1024}\ns_add_u32 s71, s71, {A_BASE}")
        a("s_lshl_b32 s79, s76, 5\ns_add_u32 s79, s79, s71\ns_lshl_b32 s80, s77, 5\ns_add_u32 s80, s80, s71")
        quads = [160, 164, 168, 172, 180, 196, 200, 204, 232, 236, 240, 244, 248]
        ND1 = 4
        pre = [(4, "s76", u * RU, rot(u), "cL") for u in (12, 13)]
        for g in range(7):
            pre.append((5, "s77", g * 64 * 3584, g * 4096, f"c{g}"))
            for u in (2 * g, 2 * g + 1):
                if u < ND1: pre.append((4, "s76", 128 + u * RU, R1 + u * 4096, f"c{g}"))
        self.vwr = 18
        if not grpB: a(f"v_add_u32 v18, s{sW1K}, v2\nv_add_u32 v19, 0x10000, v18")
        self.ln_main(True, False)
        if not grpB:
            bias()
            for u in range(4, 12): uD(0, u, "E")()
            for k, (vo, sb, add, lds, wt) in enumerate(pre): self.f_ld(quads[k], vo, sb, add, f"r{k}")()
            self.wait_vm("bias")
        else:
            a("s_waitcnt vmcnt(0)"); self.vm = []
            a("s_cmp_lg_u32 s78, 7\ns_cbranch_scc1 L_nolead2")
            a(f"s_lshl_b32 s70, s{sG}, 2\nv_mov_b32 v12, s70\nv_mov_b32 v13, 1\ns_mov_b64 exec, 1")
            a(f"buffer_store_dword v13, v12, {srd(sDBG)}, 0 offen offset:64 sc1\ns_mov_b64 exec, -1\nL_nolead2:")
        self.lg0(); self.bar()
        self.stamp("x1")
        WF = lambda i: 208 + 4 * (i % 6)
        adS = lambda s, q: (26, 1024 * s + 256 * q)
        adD = lambda s, q: (24, 2048 * ((s + 4) % 28) + 512 * q)
        ad1 = lambda s, q: (25, 2048 * s + 512 * q)
        seq = [adD, ad1, adD] if grpB else [adD, adS, ad1, adD]
        n = 28 * len(seq)
        ACC = lambda b: 144 + 16 * (b & 1)
        def xr(s): self.lgop(f"ds_read_b128 {vr(32+4*s,4)}, v{8+(s&3)} offset:{128*(s>>2)}", f"xf{s}")
        def rd(i):
            b, s = divmod(i, 28)
            if i < 4: xr(i)
            for q in range(2):
                vb, imm = seq[b](s, q)
                self.lgop(f"ds_read_b64_tr_b16 {vr(WF(i)+2*q,2)}, v{vb} offset:{imm}", f"w{i}")
        def mm(i):
            b, s = divmod(i, 28); acc = ACC(b)
            if s == 0: a(f"v_mfma_f32_32x32x16_bf16 {vr(acc,16)}, {vr(184+2*b,4)}, v[176:179], 0")
            self.wait_lg(f"w{i}", f"xf{i}")
            a(f"v_mfma_f32_32x32x16_bf16 {vr(acc,16)}, {vr(WF(i),4)}, {vr(32+4*s,4)}, {vr(acc,16)}")
        ev = {}; fi = {}
        E = lambda i, *x: ev.setdefault(i, []).extend(x)
        wv = lambda *t: (lambda: self.wait_vm(*t))
        wl = lambda t: (lambda: self.wait_lg(t))
        st = lambda nm: (lambda: self.stamp(nm))
        for i in range(5): fi[i] = [lambda s=s: xr(s) for s in range(4 + 5 * i, min(28, 9 + 5 * i))]
        uS = lambda u, tag: self.f_dma(5, sWA, "s77", u * 64 * 3584, u * 4096, tag)
        u1 = lambda u, tag: self.f_dma(4, sWA, "s76", 128 + u * RU, R1 + u * 4096, tag)
        fb = lambda units: [self.f_b(1, s, h, "BE") for s, h in units]
        both = lambda slots: [(s, h) for s in slots for h in range(2)]
        X2 = 6
        E(4, "hold")
        E(X2, wl("xf27"), wv("E"), self.bar, st("m0"), "go")
        if not grpB:
            self.spread(fi, [self.f_wr(quads[k], lds, f"r{k}", wt) for k, (vo, sb, add, lds, wt) in enumerate(pre)], X2, X2 + 16)
        else:
            self.spread(fi, [u1(u, f"c{u//2}") for u in range(ND1, 14)], X2, X2 + 10)
        def cert(i, tags, *more):
            E(i, (lambda: self.wait_vm(*tags)) if grpB else (lambda: self.wait_lg(*tags)), self.bar, *more)
        cert(19, ["cL", "c0", "c1"], st("m1"))
        cert(28, ["c2", "c3"], st("m2"))
        cert(38, ["c4", "c5", "c6"])
        d2 = [uD(256, u, "D2") for u in (range(4, 14) if grpB else range(4))]
        self.spread(fi, d2, 28, 28 + len(d2))
        if not grpB: self.spread(fi, [lambda: self.cert_load(L)] + fb(both([4])), 40, 48)
        else: self.spread(fi, fb(both([5])), 42, 48)
        E(51, wv("D2"), self.bar, st("m3")); fi.setdefault(52, []).append(self.f_touchB())
        E(57, *([wv("#cert"), lambda: self.cert_check(L)] if not grpB else []), self.bar, st("m4"))
        self.spread(fi, fb(both([0]) if not grpB else both([1, 2, 3])), 57, 75)
        if not grpB:
            E(85, self.bar, st("m5")); self.spread(fi, fb(both([6, 7])), 86, 104)
            outs = [("s79", 64), ("s80", 0), ("s79", 192), ("s79", 320)]
        else:
            E(83, self.bar, st("m5"))
            outs = [("s79", 0), ("s79", 128), ("s79", 256)]
        nb = len(seq)
        for b in range(nb - 1):
            self.spread(fi, self.gelu_items(ACC(b), *outs[b], f"st{b}"), 28 * (b + 1) + 1, 28 * (b + 2) - 1)
            if b + 2 < nb: fi.setdefault(28 * (b + 2) + 20, []).append(self.f_touchA(f"st{b}", outs[b][0], outs[b][1] * 32))
        self.pipeline(n, 4, rd, mm, ev, fi)
        self.stamp("m6")
        G = self.gelu_items(ACC(nb - 1), *outs[-1], "st")
        if grpB:
            for k, f in enumerate(fb(both([8, 9, 10, 11, 12]))): G.insert(12 * k, f)
        for f in G: f()
        self.finish1([13, 14, 15], int(grpB), [(o[0], o[1] * 32) for o in outs[-2:]])

    def type_q(self):
        a = self.a
        RK, XB, HALO = 106496, 73728, 57344
        RU = 32 * 2688
        KP, VP, QP = 164, 176, 188
        MC, MP, MP0, PM = 196, 200, 204, 244
        rot = lambda u: RK + ((u + 6) % 14) * 4096
        uK = lambda col, u, tag: self.f_dma(4, sWA, "s76", col + u * RU, rot(u), tag)
        uV = lambda u, tag: self.f_dma(4, sWA, "s76", 1792 + u * RU, u * 4096, tag)
        for grpB in range(2):
            self.vm = list(self.vm0); self.lg = []
            a(f"L_Q{'AB'[grpB]}:")
            a(f"s_lshl_b32 s70, s{sG}, 7\ns_lshl_b32 s71, s{sWAVE}, 1\ns_add_u32 s70, s70, s71\ns_sub_u32 s70, s70, 16\ns_mul_i32 s70, s70, 896")
            a("v_lshrrev_b32 v12, 5, v1\nv_mul_u32_u24 v12, 896, v12\nv_and_b32 v13, 31, v1\nv_lshl_add_u32 v5, v13, 4, v12\nv_add_u32 v5, s70, v5")
            a("v_mov_b32 v14, 0x80000000\nv_cmp_gt_u32 vcc, 28, v13\nv_cndmask_b32 v5, v14, v5, vcc")
            for jj in range(2):
                self.vmop(f"buffer_load_dwordx4 {vr(88+4*jj,4)}, v5, {srd(sX)}, 0 offen offset:{448*jj}", f"hx{jj}")
            self.mksrd(sWA, 6, 448 * 2688)
            self.dma_voff(2688)
            a(f"s_mul_i32 s76, s{sNT}, 112")
            if grpB:
                for u in range(4): uK(896, u, "E")()
            self.common_setup()
            a(f"s_and_b32 s81, s{sWAVE}, 1\ns_add_u32 s81, s81, {2*grpB}\ns_bfe_u32 s80, s{sWAVE}, 0x10001")
            a(f"s_lshl_b32 s70, s81, 5\ns_add_u32 s70, s70, {16*grpB}\ns_mul_i32 s70, s70, 896")
            a("v_and_b32 v12, 15, v1\nv_mul_u32_u24 v13, 896, v12\nv_bfe_u32 v12, v1, 1, 3\nv_lshrrev_b32 v14, 4, v1\nv_xor_b32 v12, v12, v14")
            a("v_lshl_add_u32 v10, v12, 4, v13\nv_xor_b32 v12, 4, v12\nv_lshl_add_u32 v11, v12, 4, v13")
            a(f"v_add_u32 v8, s70, v10\nv_add_u32 v9, s70, v11\nv_add_u32 v10, {HALO}, v10\nv_add_u32 v11, {HALO}, v11")
            a("s_mul_i32 s70, s80, 56")
            a("v_lshrrev_b32 v12, 4, v1\nv_bfe_u32 v13, v1, 2, 2\nv_lshl_add_u32 v14, v12, 3, v13\nv_lshlrev_b32 v14, 7, v14")
            a("v_lshrrev_b32 v13, 1, v13\nv_lshlrev_b32 v13, 6, v13\nv_and_b32 v12, 1, v12\nv_lshl_or_b32 v13, v12, 5, v13")
            a("v_and_b32 v12, 3, v1\nv_lshlrev_b32 v12, 3, v12\nv_add_u32 v12, s70, v12")
            a("v_xor_b32 v15, v12, v13\nv_add_u32 v24, v14, v15\nv_add_u32 v12, 32, v12\nv_xor_b32 v15, v12, v13\nv_add_u32 v25, v14, v15")
            a(f"v_add_u32 v26, {RK}, v24\nv_add_u32 v27, {RK}, v25")
            a(f"v_lshrrev_b32 v12, 5, v1\ns_lshl_b32 s70, s{sWAVE}, 1\nv_add_u32 v12, s70, v12\nv_bfe_u32 v13, v12, 1, 3\nv_mul_u32_u24 v12, 896, v12\nv_add_u32 v12, {HALO}, v12")
            a("v_and_b32 v14, 31, v1\nv_xor_b32 v15, v14, v13\nv_lshl_add_u32 v16, v15, 4, v12\nv_add_u32 v14, 28, v14\nv_xor_b32 v15, v14, v13\nv_lshl_add_u32 v17, v15, 4, v12")
            a(f"s_mul_i32 s70, s80, 10240\ns_add_u32 s70, s70, {XB}\nv_add_u32 v18, s70, v2")
            a("s_lshl_b32 s71, s81, 11\nv_add_u32 v28, s71, v18\nv_add_u32 v29, 2048, v28")
            quads = [164, 168, 172, 176, 180, 184, 188, 192, 196, 200, 204]
            pre = [(896 + u * RU, rot(u), "cL") for u in range(8, 14)] + [(1792 + u * RU, u * 4096, "cV") for u in range(5)]
            self.vwr = 250
            if not grpB: a(f"v_add_u32 v250, s{sW1K}, v2\nv_add_u32 v251, 0x10000, v250")
            self.ln_main(False, True)
            self.stats(88, 2, 104, 105, ["hx0", "hx1"])
            self.reduce_dpp([104, 105], True)
            self.ln_scale(104, 105, False)
            a("s_mov_b32 s70, 0x0fffffff\ns_mov_b32 s71, 0x0fffffff")
            for jj in range(2): self.normalize(88 + 4 * jj, 104, 105, 106, 96)
            a("s_mov_b64 exec, s[70:71]")
            for jj in range(2): a(f"ds_write_b128 v{16+jj}, {vr(88+4*jj,4)}")
            a("s_mov_b64 exec, -1")
            if not grpB:
                for u in range(4, 8): uK(896, u, "E")()
                for k, (add, lds, wt) in enumerate(pre): self.f_ld(quads[k], 4, "s76", add, f"r{k}")()
            self.wait_vm("E")
            wrs = [self.f_wr(quads[k], lds, f"r{k}", wt) for k, (add, lds, wt) in enumerate(pre)]
            self.lg0(); self.bar()
            self.stamp("x1")
            vmq = list(self.vm)
            a(f"s_bitcmp1_b32 s{sWAVE}, 0\ns_cbranch_scc1 L_Q{2*grpB+1}")
            for qt in (2 * grpB, 2 * grpB + 1):
                self.vm = list(vmq); self.lg = []
                self.q_rounds(qt, uK, uV, KP, VP, self.q_consts(MC, MP, MP0, PM), wrs)
                self.finish_q(qt, KP, VP, QP, MC, MP, MP0, PM)

    def q_consts(self, MC, MP, MP0, PM):
        L = []
        def a(t):
            L.append(lambda t=t: self.a(t))
        a("v_and_b32 v12, 15, v1\nv_lshrrev_b32 v13, 4, v1\nv_lshlrev_b32 v13, 2, v13\nv_sub_u32 v12, v12, v13")
        a(f"v_mov_b32 v14, {hx(NEG)}\nv_mov_b32 v15, 0")
        a(f"s_or_b32 s82, s81, s{sG}\ns_cmp_eq_u32 s82, 0\ns_cselect_b32 s78, {hx(NEG)}, 0")
        for r in range(4):
            a(f"v_subrev_u32 v13, {r}, v12\nv_and_b32 v19, 0x80000001, v13")
            a(f"v_cmp_eq_u32 vcc, 0, v19\nv_mov_b32 v20, {'0xffff0000' if r&1 else '0x0000ffff'}\ns_nop 0\nv_cndmask_b32 v{MC+r}, v14, v15, vcc\nv_cndmask_b32 v{21+(r&1)}, v15, v20, vcc")
            a(f"v_cmp_eq_u32 vcc, 0x80000000, v19")
            if r & 1: a(f"v_or_b32 v{PM+2+(r>>1)}, v21, v22")
            a(f"v_cndmask_b32 v{MP+r}, v14, v15, vcc\nv_cndmask_b32 v{252+(r&1)}, v15, v20, vcc")
            if r & 1: a(f"v_or_b32 v{PM+(r>>1)}, v252, v253")
            a(f"v_min_f32 v{MP0+r}, s78, v{MP+r}")
        qs = 28 ** -0.5 * LOG2E
        a(f"v_cmp_gt_u32 vcc, 48, v1\nv_mov_b32 v19, {hx(qs)}\ns_nop 0\nv_cndmask_b32 v20, v15, v19, vcc\nv_cndmask_b32 v21, 0, -1, vcc")
        a("v_lshrrev_b32 v12, 4, v1\nv_and_b32 v13, 15, v1\nv_lshlrev_b32 v13, 4, v13\nv_lshl_add_u32 v22, v12, 9, v13")
        a(f"s_lshl_b32 s79, s{sG}, 2\ns_add_u32 s79, s79, s81\ns_mul_i32 s79, s79, 144\ns_lshl_b32 s83, s{sNT}, 1\ns_add_u32 s82, s80, s83\ns_lshl_b32 s82, s82, 1")
        a(f"s_add_u32 s79, s79, s82\ns_add_u32 s79, s79, 112\ns_lshl_b32 s79, s79, 10\ns_add_u32 s79, s79, {A_BASE}")
        return L

    def q_rounds(self, qt, uK, uV, KP, VP, consts, wrs):
        a = self.a; grpB = qt >> 1
        WF = lambda i, db: 208 + 8 * (i % 3) + 4 * db
        HF = lambda i: 232 + 4 * (i % 3)
        wv = lambda *t: (lambda: self.wait_vm(*t))
        wl = lambda t: (lambda: self.wait_lg(t))
        st = lambda nm: (lambda: self.stamp(nm))
        def xr(tb, s): self.lgop(f"ds_read_b128 {vr(32+4*(14*tb+s),4)}, v{8+(s&1)} offset:{128*(s>>1)+14336*tb}", f"xf{s}")
        a(f"L_Q{qt}:")
        halo = {0: (qt if qt < 2 else None), 1: (qt - 2 if qt >= 2 else None), 2: None}
        def rd(i):
            rnd, s = divmod(i, 14)
            if i < 2: xr(0, i); xr(1, i)
            b0 = 24 if rnd == 1 else 26
            so = s if rnd == 1 else (s + 6) % 14
            for db in range(2):
                for q in range(2):
                    self.lgop(f"ds_read_b64_tr_b16 {vr(WF(i,db)+2*q,2)}, v{b0+db} offset:{4096*so+512*q}", f"w{i}")
            if halo[rnd] is not None:
                self.lgop(f"ds_read_b128 {vr(HF(i),4)}, v{10+(s&1)} offset:{128*(s>>1)}", f"w{i}")
        def mf(rnd, acc, w, x, first):
            aa, bb = (x, w) if rnd == 1 else (w, x)
            a(f"v_mfma_f32_16x16x32_bf16 {vr(acc,4)}, {vr(aa,4)}, {vr(bb,4)}, {'0' if first else vr(acc,4)}")
        def mm(i):
            rnd, s = divmod(i, 14)
            if s == 0 and rnd > 0: pack(rnd - 1)
            self.wait_lg(f"w{i}", f"xf{i}")
            for tb in range(2):
                for db in range(2):
                    mf(rnd, 144 + 8 * tb + 4 * db, WF(i, db), 32 + 4 * (14 * tb + s), s == 0)
            if halo[rnd] is not None: mf(rnd, 160, WF(i, halo[rnd]), HF(i), s == 0)
        def pack(rnd):
            if rnd == 0:
                for tb in range(2):
                    for k in range(4): a(f"v_cvt_pk_bf16_f32 v{KP+4*(tb+1)+k}, v{144+8*tb+2*k}, v{144+8*tb+2*k+1}")
                self.lgop(f"ds_write_b128 v29, {vr(KP+8,4)}", "xw")
            else:
                for tb in range(2):
                    for db in range(2):
                        for k in range(2):
                            r = 144 + 8 * tb + 4 * db + 2 * k
                            a(f"v_cvt_pk_bf16_f32 v{VP+6*db+2+2*tb+k}, v{r}, v{r+1}")
                for db in range(2): self.lgop(f"ds_write_b64 v29, {vr(VP+6*db+4,2)} offset:{1024+8*db}", "xw")
            if halo[rnd] is not None:
                a("v_cvt_pk_bf16_f32 v248, v160, v161\nv_cvt_pk_bf16_f32 v249, v162, v163")
                self.lgop(f"ds_write_b64 v18, v[248:249] offset:{1024*rnd+8*halo[rnd]}", "xw")
        ev = {}; fi = {}
        E = lambda i, *x: ev.setdefault(i, []).extend(x)
        for i in range(3): fi[i] = [lambda tb=tb, s=s: xr(tb, s) for s in range(2 + 4 * i, 6 + 4 * i) for tb in range(2)]
        mine = lambda lo, hi: range(lo + grpB, hi, 2)
        E(4, wl("xf13"), self.bar, st("m0"))
        if not grpB:
            fi.setdefault(4, []).extend(wrs[:4]); fi.setdefault(5, []).extend(wrs[4:6]); self.spread(fi, wrs[6:], 6, 11)
        else:
            self.spread(fi, [uV(u, "cV") for u in range(5, 14)], 4, 9)
        E(6, wl("cL"), self.bar, st("m1"))
        E(11, wv("cV"), wl("cV"), self.bar, st("m2"))
        self.spread(fi, ([lambda: self.cert_load(f"Q{qt}")] if qt == 0 else []) + [uK(0, u, "Q0") for u in mine(0, 8)], 11, 14)
        E(14, self.bar, st("m3"))
        self.spread(fi, [uK(0, u, "Q1") for u in mine(8, 14)], 14, 18)
        fi.setdefault(27, []).append(self.f_touchB())
        E(25, wv("Q0", "#cert"), *([lambda: self.cert_check(f"Q{qt}")] if qt == 0 else []), self.bar, st("m4"))
        def xread():
            self.lgop(f"ds_read_b128 {vr(KP,4)}, v28", "xk")
            for db in range(2): self.lgop(f"ds_read_b64 {vr(VP+6*db,2)}, v28 offset:{1024+8*db}", "xk")
        E(29, wv("Q1"), wl("xw"), self.bar, st("m5"), xread)
        self.spread(fi, [self.f_b(1, s, grpB, "BE") for s in range(8)], 29, 42)
        self.spread(fi, consts, 12, 25)
        self.pipeline(42, 2, rd, mm, ev, fi)
        self.stamp("m6")

    def finish_q(self, qt, KP, VP, QP, MC, MP, MP0, PM):
        a = self.a
        for tb in range(2):
            for db in range(2):
                for k in range(4):
                    r = 144 + 8 * tb + 4 * db + k
                    a(f"v_mul_f32 v{r}, v{19+db}, v{r}")
            for k in range(4): a(f"v_cvt_pk_bf16_f32 v{QP+4*tb+k}, v{144+8*tb+2*k}, v{144+8*tb+2*k+1}")
        self.lg0()
        for tb in range(2):
            a(f"v_mfma_f32_16x16x32_bf16 {vr(144+8*tb,4)}, {vr(KP+4*tb,4)}, {vr(QP+4*tb,4)}, {vr(MP0 if tb==0 else MP,4)}")
            a(f"v_mfma_f32_16x16x32_bf16 {vr(148+8*tb,4)}, {vr(KP+4*tb+4,4)}, {vr(QP+4*tb,4)}, {vr(MC,4)}")
        E_ = 208
        both = lambda f: [a(f(tb, 144 + 8 * tb, E_ + 4 * tb)) for tb in range(2)]
        both(lambda tb, s, e: f"v_max3_f32 v{e}, v{s}, v{s+1}, v{s+4}")
        both(lambda tb, s, e: f"v_max3_f32 v{e+1}, v{s+2}, v{s+3}, v{s+6}")
        both(lambda tb, s, e: f"v_max_f32 v{e}, v{e}, v{s+5}")
        both(lambda tb, s, e: f"v_max_f32 v{e+1}, v{e+1}, v{s+7}")
        both(lambda tb, s, e: f"v_max_f32 v{e+2}, v{e}, v{e+1}")
        for sw in ("16", "32"):
            both(lambda tb, s, e: f"v_mov_b32 v{e+3}, v{e+2}")
            both(lambda tb, s, e: f"v_permlane{sw}_swap_b32 v{e+2}, v{e+3}")
            both(lambda tb, s, e: f"v_max_f32 v{e+2}, v{e+2}, v{e+3}")
        both(lambda tb, s, e: f"v_sub_f32 v{e}, v{e}, v{e+2}")
        both(lambda tb, s, e: f"v_sub_f32 v{e+1}, v{e+1}, v{e+2}")
        both(lambda tb, s, e: f"v_exp_f32 v{e}, v{e}")
        both(lambda tb, s, e: f"v_exp_f32 v{e+1}, v{e+1}")
        both(lambda tb, s, e: f"v_add_f32 v{e+2}, v{e}, v{e+1}")
        for sw in ("16", "32"):
            both(lambda tb, s, e: f"v_mov_b32 v{e+3}, v{e+2}")
            both(lambda tb, s, e: f"v_permlane{sw}_swap_b32 v{e+2}, v{e+3}")
            both(lambda tb, s, e: f"v_add_f32 v{e+2}, v{e+2}, v{e+3}")
        both(lambda tb, s, e: f"v_rcp_f32 v{e+2}, v{e+2}")
        both(lambda tb, s, e: f"v_mul_f32 v{e}, v{e}, v{e+2}")
        both(lambda tb, s, e: f"v_mul_f32 v{e+1}, v{e+1}, v{e+2}")
        both(lambda tb, s, e: f"v_cvt_pk_bf16_f32 v{e}, v{e}, v{e}")
        both(lambda tb, s, e: f"v_cvt_pk_bf16_f32 v{e+1}, v{e+1}, v{e+1}")
        P = 216
        for k in range(4): both(lambda tb, s, e: f"v_and_b32 v{P+4*tb+k}, v{PM+k}, v{e+(k&1)}")
        for tb in range(2):
            for db in range(2):
                a(f"v_mfma_f32_16x16x32_bf16 {vr(144+8*tb+4*db,4)}, {vr(VP+6*db+2*tb,4)}, {vr(P+4*tb,4)}, 0")
        for tb in range(2):
            O = 224 + 4 * tb
            for k in range(4): a(f"v_cvt_pk_bf16_f32 v{O+k}, v{144+8*tb+2*k}, v{144+8*tb+2*k+1}")
            a(f"v_and_b32 v{O+2}, v21, v{O+2}\nv_and_b32 v{O+3}, v21, v{O+3}")
            self.vmop(f"buffer_store_dwordx4 {vr(O,4)}, v22, {srd(sWS)}, s79 offen offset:{256*tb} sc1", "st")
        self.finish1(range(8, 16), qt >> 1, [("s79", 0)])

    def finish1(self, late, half, tl):
        a = self.a
        self.stamp("p1end")
        a(f"s_lshl_b32 s72, s{sG}, 12\ns_lshl_b32 s73, s{sTYPE}, 8\ns_add_u32 s72, s72, s73\ns_lshl_b32 s73, s{sNT}, 5\ns_add_u32 s72, s72, s73")
        a(f"s_lshl_b32 s73, s{sWAVE}, 2\ns_add_u32 s72, s72, s73\ns_add_u32 s72, s72, {FLAG_BASE}\nv_mov_b32 v16, 1\nv_mov_b32 v17, 0")
        def flag():
            a("s_mov_b64 exec, 1")
            self.wait_vm("st")
            self.vmop(f"buffer_store_dword v16, v17, {srd(sWS)}, s72 offen sc1", "fl")
            a("s_mov_b64 exec, -1")
            self.stamp("flag")
        early = self.on("flagfirst")
        if early: flag()
        self.wait_vm("BE"); self.bar()
        self.stamp("z")
        late = list(late)
        for s in late[:3]: self.f_b(1, s, half, "BL")()
        if not early: flag()
        for s in late[3:]: self.f_b(1, s, half, "BL")()
        for s in range(16, 20): self.f_b(2, s, half, "B2")()
        a("s_mov_b64 exec, 0xffff")
        for k in range(2):
            sbase, add = tl[k % len(tl)]
            a(f"s_add_u32 s75, {sbase}, {add}")
            if self.on("touchA"): self.vmop(f"buffer_load_dword v4, v255, {srd(sWS)}, s75 offen sc1", "ta")
        a("s_mov_b64 exec, -1\ns_branch L_P2")

    def phase2(self):
        a = self.a
        sMH, sAB = 76, 77
        a("L_P2:")
        a(f"s_and_b32 s{sMH}, s{sWAVE}, 1")
        a("v_lshrrev_b32 v12, 5, v1\nv_bfe_u32 v13, v1, 2, 2\nv_lshl_add_u32 v14, v12, 2, v13")
        a("v_bfe_u32 v15, v1, 4, 1\nv_lshlrev_b32 v15, 1, v15\nv_bfe_u32 v12, v1, 1, 1\nv_or_b32 v15, v15, v12")
        a("v_lshrrev_b32 v13, 1, v13\nv_lshlrev_b32 v13, 2, v13\nv_xor_b32 v15, v15, v13\nv_lshlrev_b32 v15, 4, v15")
        a("v_and_b32 v12, 1, v1\nv_lshl_or_b32 v15, v12, 3, v15\nv_lshl_add_u32 v5, v14, 7, v15\nv_xor_b32 v8, 64, v5")
        a("v_add_u32 v6, 0x10000, v5\nv_add_u32 v7, 0x20000, v5\nv_add_u32 v9, 0x10000, v8\nv_add_u32 v10, 0x20000, v8")
        a(f"s_lshl_b32 s70, s{sM2}, 1\ns_add_u32 s70, s70, s{sMH}\ns_mul_i32 s{sAB}, s70, {144*1024}\ns_add_u32 s{sAB}, s{sAB}, {A_BASE}")
        a(f"s_lshl_b32 s70, s70, 5\nv_and_b32 v12, 31, v1\nv_add_u32 v12, s70, v12\nv_mul_u32_u24 v3, 896, v12\nv_lshrrev_b32 v12, 5, v1\nv_lshlrev_b32 v12, 4, v12")
        a(f"v_add3_u32 v3, v3, v12, s{sN2B}")
        a(f"s_cmp_ge_u32 s{sWAVE}, 6\ns_cbranch_scc1 L_P2_2\ns_cmp_ge_u32 s{sWAVE}, 4\ns_cbranch_scc1 L_P2_3\ns_cmp_ge_u32 s{sWAVE}, 2\ns_cbranch_scc1 L_P2_1")
        ACC, BR, AF, BF = 96, 128, 32, 16
        RING0 = int(self.opt.get("ring0", 6)); RSTEP = int(self.opt.get("rstep", 2))
        for p in range(4):
            half = p >> 1
            self.vm = ["BL"] + ["B2"] * 4 + (["ta"] * 2 if self.on("touchA") else []); self.lg = []
            a(f"L_P2_{p}:")
            def baddr(slot, sl, nb, q):
                loc = (sl * 2048 + q * 1024) if p < 3 else (28 * (sl >> 1) + 8 * (sl & 1) + 16 * q) * 128
                off = slot * SLOT + loc
                return 5 + 3 * nb + (off >> 16), off & 0xffff
            def b1regs(cs):
                for c in cs:
                    for sl in range(4):
                        for nb in range(2):
                            for q in range(2):
                                vb, imm = baddr(b1_slot(p, c), sl, nb, q)
                                a(f"ds_read_b64_tr_b16 {vr(BR+8*(4*c+sl)+4*nb+2*q,2)}, v{vb} offset:{imm}")
            if p == 0:
                a(f"s_min_u32 s70, s{sN2B}, 768\ns_load_dwordx16 s[4:19], s[{sB2P}:{sB2P+1}], s70\ns_add_u32 s70, s70, 64")
            b1regs([0, 1])
            if p == 0:
                a("v_mov_b32 v29, 0xffff0000\ns_mov_b32 s82, 0\ns_mov_b32 s83, -1\ns_waitcnt lgkmcnt(0)")
                self.unpack_bias(4, ACC)
                a(f"s_load_dwordx16 s[4:19], s[{sB2P}:{sB2P+1}], s70")
            self.vmop(f"buffer_load_dwordx4 v[12:15], v3, {srd(sX)}, 0 offen offset:{32*p}", "xr")
            self.lg0(); self.bar()
            a(f"s_cmp_ge_u32 s{sN2B}, 896\ns_cbranch_scc1 L_FIN")
            for s in range(0, 8): self.f_b(2, s, half, "B2")()
            self.wait_vm("BL"); self.bar()
            self.stamp("y")
            b1regs([2, 3])
            if p == 0: self.unpack_bias(4, ACC + 16)
            self.lg0(); self.bar()
            self.stamp("v")
            def last():
                if half == 0:
                    for s in range(8, 16):
                        for h in range(2): self.f_b(2, s, h, "B2")()
            if p == 0:
                a(f"s_cmp_lg_u32 s{sWAVE}, 0\ns_cbranch_scc1 L_np\ns_mov_b32 s71, 0\ns_lshr_b32 s72, s{sM2}, 1\ns_lshl_b32 s72, s72, 12\ns_add_u32 s72, s72, {FLAG_BASE}\nv_lshlrev_b32 v11, 3, v1")
                a(f"L_poll:\nbuffer_load_dwordx2 v[16:17], v11, {srd(sWS)}, s72 offen sc1\ns_waitcnt vmcnt(0)\nv_and_b32 v16, v16, v17\nv_cmp_ne_u32 vcc, 1, v16\ns_nop 1\ns_cbranch_vccz L_got")
                a("s_add_u32 s71, s71, 1\ns_cmp_ge_u32 s71, 0x40000\ns_cbranch_scc1 L_got\ns_sleep 1\ns_branch L_poll\nL_got:")
                self.stamp("got")
                self.bar()
                vsave = list(self.vm)
                last()
                a("s_branch L_u\nL_np:")
                self.vm = vsave
            last()
            if half: self.wait_vm("B2")
            self.bar()
            if p == 0: a("L_u:")
            if half: self.bar()
            self.stamp("poll")
            nL = P_NL[p]; nst = nL + 16
            order = [("r", k) for k in range(16)] + [("l", k) for k in range(nL)]
            gstep = lambda o: P_FIRST[p] + (o[1] if o[0] == "l" else nL + o[1])
            areg = {}; free = [AF + 4 * k for k in range(16)]; nxt = [0]
            def lda():
                n = nxt[0]
                if n >= nst or not free: return
                areg[n] = free.pop(0); nxt[0] += 1
                a(f"s_add_u32 s74, s{sAB}, {gstep(order[n])*1024}")
                self.vmop(f"buffer_load_dwordx4 {vr(areg[n],4)}, v2, {srd(sWS)}, s74 offen sc1", f"a{n}")
            def rdb(n):
                if order[n][0] != "l": return
                k = order[n][1]
                for nb in range(2):
                    for q in range(2):
                        vb, imm = baddr(B2_SLOT[(p, k // 4)], k % 4, nb, q)
                        self.lgop(f"ds_read_b64_tr_b16 {vr(BF+8*(n&1)+4*nb+2*q,2)}, v{vb} offset:{imm}", f"b{n}")
            for n in range(RING0): lda()
            for n in range(nst):
                if n == 0: self.stamp("iss")
                self.wait_vm(f"a{n}"); self.wait_lg(f"b{n}")
                self.stamp(f"n{n}")
                for nb in range(2):
                    w = BF + 8 * (n & 1) + 4 * nb if order[n][0] == "l" else BR + 8 * order[n][1] + 4 * nb
                    c = "0" if (n == 0 and p != 0) else vr(ACC + 16 * nb, 16)
                    a(f"v_mfma_f32_32x32x16_bf16 {vr(ACC+16*nb,16)}, {vr(w,4)}, {vr(areg[n],4)}, {c}")
                if n == 0 and half == 0: self.bar()
                if n + 2 < nst: rdb(n + 2)
                free.append(areg[n])
                if order[n][0] == "r": free.extend([BR + 8 * order[n][1], BR + 8 * order[n][1] + 4])
                for _ in range(RSTEP): lda()
                if n == [39, 35, 29, 28][p]: self.bar()
            self.stamp("mm")
            a(f"s_lshl_b32 s70, s{sMH}, 15\nv_add_u32 v8, s70, v2")
            a("v_permlane32_swap_b32 v12, v14\nv_permlane32_swap_b32 v13, v15")
            X = 64
            for j in range(4): a(f"v_lshlrev_b32 v{X+2*j}, 16, v{12+j}\nv_and_b32 v{X+2*j+1}, 0xffff0000, v{12+j}")
            for d in range(4):
                if d == p: continue
                for j in range(2): a(f"ds_write_b128 v8, {vr(ACC+8*d+4*j,4)} offset:{(d*4+p)*2048+1024*j}")
            self.lg0(); self.bar()
            R = {}; k = 0
            for src in range(4):
                if src == p: R[src] = ACC + 8 * p; continue
                R[src] = 32 + 8 * k; k += 1
                for j in range(2): a(f"ds_read_b128 {vr(R[src]+4*j,4)}, v8 offset:{(p*4+src)*2048+1024*j}")
            self.lg0()
            T, U = 72, 80
            for k in range(8): a(f"v_add_f32 v{T+k}, v{R[0]+k}, v{R[1]+k}")
            for k in range(8): a(f"v_add_f32 v{T+k}, v{T+k}, v{R[2]+k}")
            for k in range(8): a(f"v_mul_f32 v{U+k}, {hx(-LOG2E)}, v{T+k}")
            for k in range(8): a(f"v_exp_f32 v{U+k}, v{U+k}")
            for k in range(8): a(f"v_mul_f32 v{T+k}, v{T+k}, v{R[3]+k}")
            for k in range(8): a(f"v_add_f32 v{U+k}, 1.0, v{U+k}")
            for k in range(8): a(f"v_rcp_f32 v{U+k}, v{U+k}")
            for k in range(8): a(f"v_fmac_f32 v{X+k}, v{T+k}, v{U+k}")
            for k in range(4): a(f"v_cvt_pk_bf16_f32 v{88+k}, v{X+2*k}, v{X+2*k+1}")
            a("v_permlane32_swap_b32 v88, v90\nv_permlane32_swap_b32 v89, v91")
            a(f"buffer_store_dwordx4 v[88:91], v3, {srd(sOUT)}, 0 offen offset:{32*p}")
            if p < 3: a("s_branch L_FIN")

    def write_stamps(self):
        if not self.stamps: return
        a = self.a
        if self.opt.get("dbg"):
            a("s_waitcnt vmcnt(0)\ns_memrealtime s[100:101]\ns_waitcnt lgkmcnt(0)\ns_not_b32 s84, s84")
            a(f"s_cmp_ge_u32 s{sN2B}, 896\ns_cbranch_scc1 L_END")
            for k in range(9): a(f"v_writelane_b32 v32, s{84+2*k}, {k}")
            a(f"v_lshlrev_b32 v33, 2, v1\ns_mov_b64 exec, 0x1ff\nbuffer_atomic_umax v32, v33, {srd(sDBG)}, 0 offen sc1")
            return
        a("s_waitcnt vmcnt(0)\ns_memrealtime s[100:101]\ns_waitcnt lgkmcnt(0)")
        a(f"s_lshl_b32 s70, s2, 3\ns_add_u32 s70, s70, s{sWAVE}\ns_lshl_b32 s70, s70, 6\nv_mov_b32 v40, s70")
        for k in range(8): a(f"v_mov_b32 v{32+k}, s{84+2*k}")
        a("v_mov_b32 v44, s100\nv_mov_b32 v45, 0\nv_mov_b32 v46, 0\nv_mov_b32 v47, 0\ns_mov_b64 exec, 1")
        a(f"buffer_store_dwordx4 v[32:35], v40, {srd(sWS)}, 0 offen\nbuffer_store_dwordx4 v[36:39], v40, {srd(sWS)}, 0 offen offset:16\nbuffer_store_dwordx4 v[44:47], v40, {srd(sWS)}, 0 offen offset:32")

    def build(self, verbose=False):
        a = self.a
        self.prologue(); self.vm0 = list(self.vm)
        a(f"s_cmp_ge_u32 s{sWAVE}, 4\ns_cbranch_scc1 L_B\ns_cmp_eq_u32 s{sTYPE}, 1\ns_cbranch_scc1 L_QA\ns_branch L_HA\nL_B:\ns_cmp_eq_u32 s{sTYPE}, 1\ns_cbranch_scc1 L_QB\ns_branch L_HB")
        self.type_h(False); self.type_h(True); self.type_q(); self.phase2()
        a("L_FIN:"); self.write_stamps(); a("L_END:\ns_endpgm")
        a.fix_hazards(verbose)
        name = BASE + "_kernel"
        s = "; @launch grid=(256,1,1) block=(512,1,1) lds=163840\n"
        s += '.amdgcn_target "amdgcn-amd-amdhsa--gfx950"\n.text\n'
        s += f".globl {name}\n.p2align 8\n.type {name},@function\n{name}:\n" + a.text()
        s += f""".section .rodata,"a"
.p2align 6
.amdhsa_kernel {name}
  .amdhsa_next_free_vgpr 256
  .amdhsa_next_free_sgpr 102
  .amdhsa_accum_offset 256
  .amdhsa_group_segment_fixed_size 0
  .amdhsa_kernarg_size 88
  .amdhsa_user_sgpr_count 2
  .amdhsa_user_sgpr_kernarg_segment_ptr 1
  .amdhsa_system_sgpr_workgroup_id_x 1
.end_amdhsa_kernel
"""
        return s

if __name__ == "__main__":
    out = sys.argv[1]
    st = sys.argv[2].split(",") if len(sys.argv) > 2 and sys.argv[2] != "-" else None
    opt = {}
    for k in os.environ.get("OPT", "").split(","):
        if "=" in k: kk, vv = k.split("="); opt[kk] = vv
        elif k: opt[k] = True
    open(out, "w").write(Gen(st, opt).build(verbose=len(sys.argv) > 3))
```

```python
import sys, struct, math, os
sys.path.insert(0, "gen")
from asmlib import Asm

BASE = "recurrent_scan__sliding_local_dilated__mixer_channel_mlp__prompt"
f2u = lambda x: struct.unpack("<I", struct.pack("<f", x))[0]
hx = lambda x: "0x%08x" % f2u(x)

A_BASE = 0x100000
FLAG_BASE = 0x40000
LOG2E = 1.4426950408889634
NEG = -1.0e30
SLOT = 8192

sX, sWA, sWS, sDBG, sW2, sWO, sOUT = 28, 32, 36, 40, 44, 48, 52
sB2P = 58
sWAVE, sG, sNT, sTYPE, sM2, sN2B, sW1K = 60, 61, 62, 63, 64, 65, 66
sONES, sC2, sI = 67, 68, 69
vB, vT, vCA, vC = 31, 254, 23, 30
srd = lambda b: f"s[{b}:{b+3}]"
vr = lambda b, n: f"v[{b}:{b+n-1}]" if n > 1 else f"v{b}"

P_FIRST = [0, 40, 76, 112]; P_NL = [24, 20, 20, 16]
def b1_src(p, c): return (sWO, 224 + 56 * c) if p == 3 else (sW2, 16 * (P_FIRST[p] + P_NL[p]) + 64 * c)
def b2_src(p, c): return (sWO, 56 * c) if p == 3 else (sW2, 16 * P_FIRST[p] + 64 * c)
def b1_slot(p, c): return 2 * p + c if c < 2 else 8 + 2 * p + (c - 2)
B2_SLOT = {}
for _p in range(4):
    B2_SLOT[(_p, 0)] = 16 + _p; B2_SLOT[(_p, 1)] = 2 * _p; B2_SLOT[(_p, 2)] = 2 * _p + 1; B2_SLOT[(_p, 3)] = 8 + _p
B2_SLOT[(0, 4)] = 12; B2_SLOT[(1, 4)] = 13; B2_SLOT[(2, 4)] = 14; B2_SLOT[(0, 5)] = 15
B1_BY_SLOT = {b1_slot(p, c): (p, c) for p in range(4) for c in range(4)}
B2_BY_SLOT = {v: k for k, v in B2_SLOT.items()}

class Gen:
    def __init__(self, stamps=None, opt=None):
        self.a = Asm(); self.stamps = stamps; self.opt = opt or {}
        self.vm = []; self.lg = []; self.npc = 0
    def on(self, k): return bool(self.opt.get(k)) if k == "touchA" else not self.opt.get("no_" + k)
    def vmop(self, text, tag): self.a(text); self.vm.append(tag)
    def lgop(self, text, tag): self.a(text); self.lg.append(tag)
    def _idx(self, lst, tags): return max([i for i, t in enumerate(lst) if t in tags], default=-1)
    def wait_vm(self, *tags):
        idx = self._idx(self.vm, tags)
        if idx < 0: return
        n = sum(1 for t in self.vm[idx + 1:] if not t.startswith("#"))
        self.a(f"s_waitcnt vmcnt({min(n,63)})"); self.vm = self.vm[idx + 1:]
    def wait_lg(self, *tags):
        idx = self._idx(self.lg, tags)
        if idx < 0: return
        self.a(f"s_waitcnt lgkmcnt({min(len(self.lg)-1-idx,15)})"); self.lg = self.lg[idx + 1:]
    def lg0(self): self.a("s_waitcnt lgkmcnt(0)"); self.lg = []
    def stamp(self, name):
        if self.stamps and name in self.stamps:
            k = self.stamps.index(name); self.a(f"s_memrealtime s[{84+2*k}:{85+2*k}]")
        if self.stamps and "c" + name in self.stamps:
            k = self.stamps.index("c" + name); self.a(f"s_memtime s[{84+2*k}:{85+2*k}]")
    def mksrd(self, d, b, n):
        self.a(f"s_mov_b32 s{d}, s{b}\ns_mov_b32 s{d+1}, s{b+1}\ns_mov_b32 s{d+2}, {n}\ns_mov_b32 s{d+3}, 0x20000")
    def bar(self): self.a("s_barrier")

    def prologue(self):
        a = self.a
        a("s_cmp_ge_u32 s2, 256\ns_cbranch_scc1 L_END")
        self.stamp("start")
        a("s_load_dwordx16 s[4:19], s[0:1], 0\ns_load_dwordx4 s[20:23], s[0:1], 64\ns_load_dwordx2 s[24:25], s[0:1], 80")
        a("v_and_b32 v1, 63, v0\nv_lshrrev_b32 v12, 6, v0\nv_lshlrev_b32 v2, 4, v1")
        a(f"v_readfirstlane_b32 s{sWAVE}, v12")
        a(f"s_and_b32 s70, s2, 7\ns_lshr_b32 s{sI}, s2, 3")
        if not self.opt.get("newmap") and not self.opt.get("midmap"):
            a(f"s_and_b32 s{sG}, s70, 1\ns_lshl_b32 s{sG}, s{sG}, 3\ns_and_b32 s72, s{sI}, 7\ns_add_u32 s{sG}, s{sG}, s72")
            a(f"s_and_b32 s{sNT}, s70, 6\ns_lshr_b32 s72, s{sI}, 4\ns_add_u32 s{sNT}, s{sNT}, s72\ns_bfe_u32 s{sTYPE}, s{sI}, 0x10003")
        elif self.opt.get("midmap"):
            a(f"s_lshr_b32 s{sG}, s70, 1\ns_lshl_b32 s{sG}, s{sG}, 2\ns_and_b32 s72, s{sI}, 3\ns_add_u32 s{sG}, s{sG}, s72")
            a(f"s_and_b32 s{sNT}, s70, 1\ns_lshl_b32 s{sNT}, s{sNT}, 2\ns_lshr_b32 s72, s{sI}, 4\ns_lshl_b32 s72, s72, 1\ns_add_u32 s{sNT}, s{sNT}, s72\ns_bfe_u32 s72, s{sI}, 0x10002\ns_add_u32 s{sNT}, s{sNT}, s72\ns_bfe_u32 s{sTYPE}, s{sI}, 0x10003")
        else:
            a(f"s_lshl_b32 s{sG}, s70, 1\ns_lshr_b32 s72, s{sI}, 4\ns_add_u32 s{sG}, s{sG}, s72")
            a(f"s_and_b32 s{sNT}, s{sI}, 7\ns_bfe_u32 s{sTYPE}, s{sI}, 0x10003")
        a(f"s_lshl_b32 s{sM2}, s70, 2\ns_and_b32 s73, s{sI}, 3\ns_add_u32 s{sM2}, s{sM2}, s73\ns_lshr_b32 s72, s{sI}, 2\ns_lshl_b32 s{sN2B}, s72, 7")
        a(f"s_mov_b32 s{sONES}, 0x3f803f80\ns_and_b32 s{sW1K}, s{sWAVE}, 3\ns_lshl_b32 s{sW1K}, s{sW1K}, 10")
        a(f"v_lshrrev_b32 v3, 3, v0\ns_lshl_b32 s70, s{sWAVE}, 3\nv_add_u32 v3, s70, v3\nv_mul_u32_u24 v3, 896, v3")
        a("v_and_b32 v12, 7, v0\nv_lshl_add_u32 v3, v12, 4, v3")
        a(f"s_mul_i32 s70, s{sG}, {128*896}\ns_add_u32 s71, s70, {8*896}")
        a(f"s_lshl_b32 s72, s{sG}, 2\ns_mul_i32 s72, s72, {144*1024}\ns_add_u32 s72, s72, {A_BASE}\ns_lshl_b32 s73, s{sM2}, 1\ns_mul_i32 s73, s73, {144*1024}\ns_add_u32 s73, s73, {A_BASE}")
        a("s_waitcnt lgkmcnt(0)")
        self.mksrd(sX, 4, 2048 * 896)
        for grp in range(2):
            for j in range(7):
                self.vmop(f"buffer_load_dwordx4 {vr(32+(grp*7+j)*4,4)}, v3, {srd(sX)}, s{70+grp} offen offset:{128*j}", f"x{grp}{j}")
        a("s_mov_b64 s[10:11], s[6:7]")
        self.stamp("xiss")
        if self.on("pages"):
            a(f"s_cmp_lt_u32 s{sWAVE}, {int(self.opt.get('pw', 0))}\ns_cbranch_scc1 L_nopg")
            for b in (12, 6, 14, 22, 16, 8, 20, 18): a(f"s_load_dword s26, s[{b}:{b+1}], 0")
            a(f"s_load_dword s26, s[24:25], {FLAG_BASE}\ns_load_dword s26, s[24:25], s72\ns_load_dword s26, s[24:25], s72 offset:{4*144*1024-4}\ns_load_dword s26, s[24:25], s73\ns_load_dword s26, s[24:25], s73 offset:{2*144*1024-4}")
            a("L_nopg:")

    def warm(self):
        if not self.on("warm"): return
        a = self.a
        a("s_getpc_b64 s[72:73]\nL_pc%d:\ns_sub_u32 s72, s72, L_pc%d-%s_kernel\ns_subb_u32 s73, s73, 0" % (self.npc, self.npc, BASE)); self.npc += 1
        a(f"s_lshl_b32 s70, s{sI}, 11\ns_lshr_b32 s71, s{sW1K}, 1\ns_add_u32 s70, s70, s71\nv_and_b32 v12, 3, v1\nv_lshlrev_b32 v12, 7, v12\nv_add_u32 v12, s70, v12\ns_mov_b32 s70, L_END-{BASE}_kernel\nv_min_u32 v12, s70, v12\ns_mov_b64 exec, 15")
        self.vmop(f"global_load_dword v{vT}, v12, s[72:73]", "warm")
        a("s_mov_b64 exec, -1")
        T = [(12, 6272), (8, 1568), (16, 6272), (10, 4704)]
        for w, (b, sl) in enumerate(T):
            a(f"s_cmp_eq_u32 s{sWAVE}, {w}\ns_cselect_b64 s[72:73], s[{b}:{b+1}], s[72:73]\ns_cselect_b32 s70, {sl}, s70")
        a(f"s_sub_u32 s71, s70, 4\ns_mul_i32 s70, s70, s2\nv_min_u32 v12, s71, v255\nv_add_u32 v12, s70, v12")
        self.vmop(f"global_load_dword v{vT}, v12, s[72:73]", "warm")

    def common_setup(self):
        a = self.a
        self.mksrd(sWS, 24, 1 << 28); self.mksrd(sDBG, 22, 256); self.mksrd(sW2, 16, 1792 * 896); self.mksrd(sWO, 8, 448 * 896); self.mksrd(sOUT, 20, 2048 * 896)
        a(f"s_mov_b64 s[{sB2P}:{sB2P+1}], s[18:19]")
        a(f"v_lshlrev_b32 v{vCA}, 2, v1\nv_and_b32 v{vCA}, 63, v{vCA}\nv_lshlrev_b32 v255, 7, v1")
        a(f"v_bfe_u32 v12, v0, 3, 5\nv_mul_u32_u24 v{vB}, 896, v12\nv_lshrrev_b32 v13, 2, v1\nv_and_b32 v13, 4, v13\nv_and_b32 v12, 7, v1\nv_xor_b32 v12, v12, v13\nv_lshl_add_u32 v{vB}, v12, 4, v{vB}")

    def f_dma(self, voff, srdb, sbase, add, lds, tag):
        def f():
            self.a(f"s_add_u32 m0, s{sW1K}, {lds}\ns_add_u32 s74, {sbase}, {add}")
            self.vmop(f"buffer_load_dwordx4 v{voff}, {srd(srdb)}, s74 offen lds", tag)
        return f
    def f_b(self, which, slot, half, tag):
        p, c = (B1_BY_SLOT if which == 1 else B2_BY_SLOT)[slot]
        sr, row = (b1_src if which == 1 else b2_src)(p, c)
        return self.f_dma(vB, sr, f"s{sN2B}", (row + 32 * half) * 896, slot * SLOT + 4096 * half, tag)

    def dma_voff(self, stride):
        a = self.a
        a(f"v_bfe_u32 v12, v0, 3, 5\nv_mul_u32_u24 v4, {stride}, v12")
        a(f"v_lshrrev_b32 v13, 2, v1\nv_and_b32 v13, 4, v13\ns_and_b32 s70, s{sWAVE}, 1\ns_lshl_b32 s70, s70, 1\nv_or_b32 v13, s70, v13")
        a("v_and_b32 v12, 7, v1\nv_xor_b32 v12, v12, v13\nv_lshl_add_u32 v4, v12, 4, v4")

    def touches(self, rowbytes):
        if not self.on("touchW"): return
        a = self.a
        n1 = (28 * rowbytes + 8191) // 8192
        a(f"s_lshr_b32 s70, s{sI}, 4\ns_lshl_b32 s71, s{sNT}, 1\ns_add_u32 s70, s70, s71\ns_mul_i32 s70, s70, {28*rowbytes}\ns_lshl_b32 s71, s{sW1K}, 3\ns_add_u32 s70, s70, s71")
        for k in range((n1 + 3) // 4):
            self.vmop(f"buffer_load_dword v{vT}, v255, {srd(sWA)}, s70 offen sc1", "tw"); a("s_add_u32 s70, s70, 32768")
        a(f"s_mul_i32 s70, s{sI}, {56*896}\ns_add_u32 s70, s70, s71")
        for k in range(2):
            self.vmop(f"buffer_load_dword v{vT}, v255, {srd(sW2)}, s70 offen sc1", "tw"); a("s_add_u32 s70, s70, 32768")
        a(f"s_mul_i32 s70, s{sI}, {14*896}\ns_lshr_b32 s71, s71, 1\ns_add_u32 s70, s70, s71")
        self.vmop(f"buffer_load_dword v{vT}, v255, {srd(sWO)}, s70 offen sc1", "tw")

    def f_touchB(self):
        def f():
            if not self.on("touchB"): return
            an = self.a
            an(f"v_mul_u32_u24 v253, 7, v255\ns_and_b32 s75, s{sM2}, 3\ns_lshl_b32 s75, s75, 3\ns_add_u32 s75, s75, s{sWAVE}\ns_lshl_b32 s74, s75, 5")
            an("s_cmp_ge_u32 s75, 12\ns_cselect_b32 s73, 256, 0\ns_add_u32 s74, s74, s73\ns_cmp_ge_u32 s75, 22\ns_cselect_b32 s73, 256, 0\ns_add_u32 s74, s74, s73")
            an(f"s_mul_i32 s74, s74, 896\ns_add_u32 s74, s74, s{sN2B}\ns_mov_b64 exec, 0xffffffff")
            self.vmop(f"buffer_load_dword v{vT}, v253, {srd(sW2)}, s74 offen sc1", "tb")
            an(f"s_mul_i32 s74, s75, {8*896}\ns_add_u32 s74, s74, s{sN2B}\ns_mov_b64 exec, 0xff")
            self.vmop(f"buffer_load_dword v{vT}, v253, {srd(sWO)}, s74 offen sc1", "tb")
            an("s_mov_b64 exec, -1")
        return f

    def f_touchA(self, tag, sbase, add):
        def f():
            if not self.on("touchA"): return
            self.wait_vm(tag)
            self.a(f"s_add_u32 s75, {sbase}, {add}\ns_mov_b64 exec, 0xffff")
            self.vmop(f"buffer_load_dword v{vT}, v255, {srd(sWS)}, s75 offen sc1", "ta")
            self.a("s_mov_b64 exec, -1")
        return f

    def reduce_dpp(self, regs, wide):
        a = self.a
        steps = ["quad_perm:[1,0,3,2]", "quad_perm:[2,3,0,1]", "row_half_mirror"] + (["row_mirror"] if wide else [])
        for st in steps:
            for r in regs: a(f"v_add_f32_dpp v{r}, v{r}, v{r} {st} row_mask:0xf bank_mask:0xf")
        if wide:
            for r in regs: a(f"v_mov_b32 v{r+4}, v{r}")
            for r in regs: a(f"v_permlane16_swap_b32 v{r}, v{r+4}")
            for r in regs: a(f"v_add_f32 v{r}, v{r}, v{r+4}")

    def ln_scale(self, s1, s2, second):
        a = self.a; t = s2 + 1
        a(f"v_mul_f32 v{s1}, {hx(1/448)}, v{s1}\nv_mul_f32 v{s2}, {hx(1/448)}, v{s2}")
        a(f"v_fma_f32 v{s2}, -v{s1}, v{s1}, v{s2}\nv_max_f32 v{s2}, 0, v{s2}")
        a(f"v_add_f32 v{t}, {hx(1e-5)}, v{s2}\nv_rsq_f32 v{t}, v{t}")
        if second:
            a(f"v_mul_f32 v{s2}, v{s2}, v{t}\nv_mul_f32 v{s2}, v{s2}, v{t}\nv_add_f32 v{s2}, {hx(1e-5)}, v{s2}\nv_rsq_f32 v{s2}, v{s2}")
            a(f"v_mul_f32 v{t}, v{t}, v{s2}")
        a(f"v_cvt_pk_bf16_f32 v{t}, v{t}, 0\nv_lshlrev_b32 v{s2}, 16, v{t}")
        a(f"v_mul_f32 v{t+1}, v{s1}, v{s2}\nv_mov_b32 v{s1}, v{t}\nv_sub_f32 v{t}, 0, v{t+1}")

    def stats(self, base, n, s1, s2, tags):
        a = self.a
        a(f"v_mov_b32 v{s1}, 0\nv_mov_b32 v{s2}, 0")
        for j in range(n):
            self.wait_vm(tags[j])
            for k in range(4):
                r = base + 4 * j + k
                a(f"v_dot2c_f32_bf16 v{s1}, s{sONES}, v{r}\nv_dot2c_f32_bf16 v{s2}, v{r}, v{r}")

    def normalize(self, base, clo, chi, nm, tmp):
        a = self.a
        for k in range(4):
            a(f"v_dot2_f32_bf16 v{tmp+2*k}, v{base+k}, v{clo}, v{nm}\nv_dot2_f32_bf16 v{tmp+2*k+1}, v{base+k}, v{chi}, v{nm}")
        for k in range(4):
            a(f"v_cvt_pk_bf16_f32 v{base+k}, v{tmp+2*k}, v{tmp+2*k+1}")

    def ln_main(self, second, qtype, after_st0=()):
        a = self.a
        a(f"v_lshrrev_b32 v12, 3, v1\ns_lshl_b32 s70, s{sWAVE}, 4")
        if qtype: a(f"s_and_b32 s71, s{sWAVE}, 4\ns_lshl_b32 s71, s71, 2\ns_add_u32 s70, s70, s71")
        a("v_add_u32 v12, s70, v12\nv_mul_u32_u24 v12, 896, v12")
        a("v_lshrrev_b32 v13, 4, v1\nv_and_b32 v14, 7, v1\nv_xor_b32 v13, v13, v14")
        a(f"v_lshl_add_u32 v6, v13, 4, v12\nv_xor_b32 v13, 4, v13\nv_lshl_add_u32 v7, v13, 4, v12\nv_add_u32 v7, {8*896}, v7")
        self.stamp("setup")
        S = [(104, 105), (112, 113)]
        for grp in range(2):
            s1, s2 = S[grp]
            self.stats(32 + grp * 28, 7, s1, s2, [f"x{grp}{j}" for j in range(7)])
            self.stamp(f"st{grp}")
            if grp == 0:
                for f in after_st0: f()
            self.reduce_dpp([s1, s2], False)
            self.ln_scale(s1, s2, second)
            for j in range(7):
                b = 32 + (grp * 7 + j) * 4
                self.normalize(b, s1, s2, s2 + 1, 96)
                a(f"ds_write_b128 v{6+grp}, {vr(b,4)} offset:{128*j}")
        self.stamp("lnend")

    def f_ld(self, dst, voff, sbase, add, tag):
        def f():
            self.a(f"s_add_u32 s74, {sbase}, {add}")
            self.vmop(f"buffer_load_dwordx4 {vr(dst,4)}, v{voff}, {srd(sWA)}, s74 offen", tag)
        return f
    def f_wr(self, src, lds, tag, wtag):
        def f():
            self.wait_vm(tag)
            self.lgop(f"ds_write_b128 v{self.vwr + (lds >> 16)}, {vr(src,4)} offset:{lds & 0xffff}", wtag)
        return f

    def cert_load(self, L):
        self.a(f"s_cmp_lg_u32 s{sWAVE}, 0\ns_cbranch_scc1 L_nc{L}\nbuffer_load_dword v{vC}, v{vCA}, {srd(sDBG)}, 0 offen offset:64 sc1\nL_nc{L}:")
        self.vm.append("#cert")
    def cert_check(self, L):
        a = self.a
        a(f"s_cmp_lg_u32 s{sWAVE}, 0\ns_cbranch_scc1 L_cok{L}\ns_mov_b32 s71, 0")
        a(f"L_cert{L}:\nv_cmp_eq_u32 vcc, 0, v{vC}\ns_nop 1\ns_cbranch_vccz L_cok{L}")
        a(f"s_add_u32 s71, s71, 1\ns_cmp_ge_u32 s71, 0x40000\ns_cbranch_scc1 L_cok{L}\ns_sleep 2\nbuffer_load_dword v{vC}, v{vCA}, {srd(sDBG)}, 0 offen offset:64 sc1\ns_waitcnt vmcnt(0)\ns_branch L_cert{L}\nL_cok{L}:")

    def unpack_bias(self, sb, acc):
        a = self.a
        for hh in range(2):
            if hh: a("s_mov_b64 exec, s[82:83]")
            for j in range(4):
                for k in range(2):
                    s = sb + 4 * j + 2 * hh + k
                    a(f"v_lshlrev_b32 v{acc+4*j+2*k}, 16, s{s}\nv_and_b32 v{acc+4*j+2*k+1}, s{s}, v29")
        a("s_mov_b64 exec, -1")

    def pipeline(self, n, depth, rd, mm, events, fillers):
        nxt = 0; hold = False
        while nxt < min(depth, n): rd(nxt); nxt += 1
        for i in range(n):
            while nxt <= i: rd(nxt); nxt += 1
            mm(i)
            for e in events.get(i, []):
                if e == "hold": hold = True
                elif e == "go": hold = False
                else: e()
            while not hold and nxt < min(i + 1 + depth, n): rd(nxt); nxt += 1
            for f in fillers.get(i, []): f()

    @staticmethod
    def spread(fillers, items, lo, hi):
        n = hi - lo
        for k, it in enumerate(items):
            fillers.setdefault(lo + k * n // len(items), []).append(it)

    def gelu_items(self, acc, sbase, add, tag):
        a = self.a; L = []
        I = lambda s: L.append(lambda s=s: a(s))
        T = lambda k: (232, 233, 234, 235, 236, 237, 238, 239, 248, 249)[k % 10]
        stage = [
            lambda k: f"v_mul_f32 v{T(k)}, v{acc+k}, v{acc+k}",
            lambda k: f"v_fma_f32 v{T(k)}, v{T(k)}, s{sC2}, v27",
            lambda k: f"v_mul_f32 v{T(k)}, v{T(k)}, v{acc+k}",
            lambda k: f"v_exp_f32 v{T(k)}, v{T(k)}",
            lambda k: f"v_add_f32 v{T(k)}, 1.0, v{T(k)}",
            lambda k: f"v_rcp_f32 v{T(k)}, v{T(k)}",
            lambda k: f"v_mul_f32 v{T(k)}, v{acc+k}, v{T(k)}",
        ]
        for t in range(16 + 7):
            k = t - 7
            if 0 <= k < 16 and k & 1:
                I(f"v_cvt_pk_bf16_f32 v{240+(k>>1)}, v{T(k-1)}, v{T(k)}")
                if k & 7 == 7:
                    def st(h=k >> 3):
                        a(f"s_add_u32 s75, {sbase}, {add*32+1024*h}")
                        self.vmop(f"buffer_store_dwordx4 {vr(240+4*h,4)}, v2, {srd(sWS)}, s75 offen sc1", tag)
                    L.append(st)
            for sg in (6, 3, 4, 2, 5, 1, 0):
                k = t - sg
                if 0 <= k < 16: I(stage[sg](k))
        return L

    def type_h(self, grpB):
        a = self.a; L = "HB" if grpB else "HA"
        RD, R1 = 106496, 49152
        RU = 32 * 3584
        self.vm = list(self.vm0); self.lg = []
        a(f"L_{L}:")
        self.mksrd(sWA, 12, 448 * 3584); self.mksrd(4, 14, 3584)
        a(f"s_lshr_b32 s70, s{sNT}, 1\ns_mul_i32 s70, s70, 896\ns_and_b32 s71, s{sNT}, 1\ns_lshl_b32 s76, s71, 9\ns_add_u32 s76, s76, s70")
        a("s_lshl_b32 s77, s71, 6\ns_add_u32 s77, s77, s70\ns_add_u32 s77, s77, 384")
        if grpB: blocks = [("s76", 0), ("s76", 128), ("s76", 256)]
        else: blocks = [("s76", 64), ("s77", 0), ("s76", 192), ("s76", 320)]
        self.dma_voff(3584)
        rot = lambda u: RD + ((u + 2) % 14) * 4096
        uD = lambda col, u, tag: self.f_dma(4, sWA, "s76", col + u * RU, rot(u), tag)
        a("v_and_b32 v29, 31, v1\nv_lshlrev_b32 v29, 1, v29")
        def bias():
            for b, (sb, off) in enumerate(blocks):
                self.vmop(f"buffer_load_ushort v{184+2*b}, v29, s[4:7], {sb} offen offset:{off}", "bias")
        if grpB and self.on("e0b"):
            for u in range(4): uD(0, u, "E0")()
        if grpB: bias()
        self.common_setup()
        if grpB:
            a(f"s_lshl_b32 s78, s{sNT}, 3\ns_add_u32 s78, s78, s{sWAVE}\ns_cmp_lg_u32 s78, 7\ns_cbranch_scc1 L_nolead1")
            a(f"s_lshl_b32 s70, s{sG}, 12\ns_add_u32 s70, s70, {FLAG_BASE}\nv_lshlrev_b32 v12, 3, v1\nv_mov_b32 v14, 0\nv_mov_b32 v15, 0")
            a(f"buffer_store_dwordx2 v[14:15], v12, {srd(sWS)}, s70 offen sc1\nL_nolead1:")
        a(f"v_bfe_u32 v12, v0, 2, 6\nv_mul_u32_u24 v5, 3584, v12\nv_and_b32 v12, 3, v1\nv_lshl_add_u32 v5, v12, 4, v5")
        c1 = -2.0 * math.sqrt(2.0 / math.pi) * LOG2E
        a(f"v_mov_b32 v27, {hx(c1)}\ns_mov_b32 s{sC2}, {hx(c1*0.044715)}")
        a("v_cmp_gt_u32 vcc, 32, v1\nv_mov_b32 v12, 0x3f80\nv_mov_b32 v177, 0\nv_cndmask_b32 v176, 0, v12, vcc\nv_mov_b32 v178, 0\nv_mov_b32 v179, 0")
        for r in (185, 187, 189, 191, 192, 193): a(f"v_mov_b32 v{r}, 0")
        if grpB: a("v_mov_b32 v190, 0")
        a(f"v_and_b32 v12, 31, v1\ns_and_b32 s70, s{sWAVE}, 3\ns_lshl_b32 s70, s70, 5\nv_add_u32 v13, s70, v12\nv_mul_u32_u24 v13, 896, v13")
        a("v_bfe_u32 v12, v1, 1, 3\nv_lshrrev_b32 v14, 5, v1\nv_xor_b32 v12, v12, v14")
        for i in range(4):
            a(f"v_xor_b32 v14, {2*i}, v12\nv_lshl_add_u32 v{8+i}, v14, 4, v13")
        a("v_lshrrev_b32 v12, 5, v1\nv_bfe_u32 v13, v1, 2, 2\nv_lshl_add_u32 v14, v12, 3, v13")
        a("v_bfe_u32 v15, v1, 4, 1\nv_lshlrev_b32 v15, 1, v15\nv_bfe_u32 v16, v1, 1, 1\nv_or_b32 v15, v15, v16")
        a("v_lshrrev_b32 v16, 1, v13\nv_lshlrev_b32 v16, 2, v16\nv_lshl_or_b32 v16, v12, 1, v16")
        a(f"v_xor_b32 v16, v15, v16\nv_xor_b32 v16, {0 if grpB else 4}, v16\nv_lshlrev_b32 v16, 4, v16")
        a("v_and_b32 v17, 1, v1\nv_lshl_or_b32 v16, v17, 3, v16\nv_lshl_add_u32 v24, v14, 7, v16")
        a(f"v_add_u32 v25, {R1}, v24\nv_add_u32 v24, {RD}, v24")
        a(f"v_lshlrev_b32 v15, 4, v15\nv_lshl_or_b32 v15, v17, 3, v15\nv_lshl_add_u32 v26, v14, 6, v15")
        a(f"s_and_b32 s70, s{sWAVE}, 3\ns_lshl_b32 s71, s{sG}, 2\ns_add_u32 s71, s71, s70\ns_mul_i32 s71, s71, {144*1024}\ns_add_u32 s71, s71, {A_BASE}")
        a("s_lshl_b32 s79, s76, 5\ns_add_u32 s79, s79, s71\ns_lshl_b32 s80, s77, 5\ns_add_u32 s80, s80, s71")
        quads = [160, 164, 168, 172, 180, 196, 200, 204, 232, 236, 240, 244, 248]
        ND1 = 4
        pre = [(4, "s76", u * RU, rot(u), "cL") for u in (12, 13)]
        for g in range(7):
            pre.append((5, "s77", g * 64 * 3584, g * 4096, f"c{g}"))
            for u in (2 * g, 2 * g + 1):
                if u < ND1: pre.append((4, "s76", 128 + u * RU, R1 + u * 4096, f"c{g}"))
        self.vwr = 18
        if not grpB: a(f"v_add_u32 v18, s{sW1K}, v2\nv_add_u32 v19, 0x10000, v18")
        self.ln_main(True, False)
        if not grpB:
            bias()
            if not self.on("e0b"):
                for u in range(4): uD(0, u, "bias")()
            for u in range(4, 12): uD(0, u, "E")()
            for k, (vo, sb, add, lds, wt) in enumerate(pre): self.f_ld(quads[k], vo, sb, add, f"r{k}")()
            self.warm()
            self.wait_vm("bias")
        else:
            a("s_waitcnt vmcnt(0)"); self.vm = []
            a("s_cmp_lg_u32 s78, 7\ns_cbranch_scc1 L_nolead2")
            a(f"s_lshl_b32 s70, s{sG}, 2\nv_mov_b32 v12, s70\nv_mov_b32 v13, 1\ns_mov_b64 exec, 1")
            a(f"buffer_store_dword v13, v12, {srd(sDBG)}, 0 offen offset:64 sc1\ns_mov_b64 exec, -1\nL_nolead2:")
        self.lg0(); self.bar()
        self.stamp("x1")
        WF = lambda i: 208 + 4 * (i % 6)
        adS = lambda s, q: (26, 1024 * s + 256 * q)
        adD = lambda s, q: (24, 2048 * ((s + 4) % 28) + 512 * q)
        ad1 = lambda s, q: (25, 2048 * s + 512 * q)
        seq = [adD, ad1, adD] if grpB else [adD, adS, ad1, adD]
        n = 28 * len(seq)
        ACC = lambda b: 144 + 16 * (b & 1)
        def xr(s): self.lgop(f"ds_read_b128 {vr(32+4*s,4)}, v{8+(s&3)} offset:{128*(s>>2)}", f"xf{s}")
        def rd(i):
            b, s = divmod(i, 28)
            if i < 4: xr(i)
            for q in range(2):
                vb, imm = seq[b](s, q)
                self.lgop(f"ds_read_b64_tr_b16 {vr(WF(i)+2*q,2)}, v{vb} offset:{imm}", f"w{i}")
        def mm(i):
            b, s = divmod(i, 28); acc = ACC(b)
            if s == 0: a(f"v_mfma_f32_32x32x16_bf16 {vr(acc,16)}, {vr(184+2*b,4)}, v[176:179], 0")
            self.wait_lg(f"w{i}", f"xf{i}")
            a(f"v_mfma_f32_32x32x16_bf16 {vr(acc,16)}, {vr(WF(i),4)}, {vr(32+4*s,4)}, {vr(acc,16)}")
        ev = {}; fi = {}
        E = lambda i, *x: ev.setdefault(i, []).extend(x)
        wv = lambda *t: (lambda: self.wait_vm(*t))
        wl = lambda t: (lambda: self.wait_lg(t))
        st = lambda nm: (lambda: self.stamp(nm))
        for i in range(5): fi[i] = [lambda s=s: xr(s) for s in range(4 + 5 * i, min(28, 9 + 5 * i))]
        uS = lambda u, tag: self.f_dma(5, sWA, "s77", u * 64 * 3584, u * 4096, tag)
        u1 = lambda u, tag: self.f_dma(4, sWA, "s76", 128 + u * RU, R1 + u * 4096, tag)
        fb = lambda units: [self.f_b(1, s, h, "BE") for s, h in units]
        both = lambda slots: [(s, h) for s in slots for h in range(2)]
        X2 = 6
        E(4, "hold")
        E(X2, wl("xf27"), wv("E"), self.bar, st("m0"), "go")
        if not grpB:
            self.spread(fi, [self.f_wr(quads[k], lds, f"r{k}", wt) for k, (vo, sb, add, lds, wt) in enumerate(pre)], X2, X2 + 16)
        else:
            self.spread(fi, [u1(u, f"c{u//2}") for u in range(ND1, 14)], X2, X2 + 10)
        def cert(i, tags, *more):
            E(i, (lambda: self.wait_vm(*tags)) if grpB else (lambda: self.wait_lg(*tags)), self.bar, *more)
        cert(19, ["cL", "c0", "c1"], st("m1"))
        cert(28, ["c2", "c3"], st("m2"))
        cert(38, ["c4", "c5", "c6"])
        d2 = [uD(256, u, "D2") for u in (range(4, 14) if grpB else range(4))]
        self.spread(fi, d2, 28, 28 + len(d2))
        if not grpB: self.spread(fi, [lambda: self.cert_load(L)] + fb(both([4])), 40, 48)
        else: self.spread(fi, fb(both([5])), 42, 48)
        E(51, wv("D2"), self.bar, st("m3")); fi.setdefault(52, []).append(self.f_touchB())
        E(57, *([wv("#cert"), lambda: self.cert_check(L)] if not grpB else []), self.bar, st("m4"))
        self.spread(fi, fb(both([0]) if not grpB else both([1, 2, 3])), 57, 75)
        if not grpB:
            E(85, self.bar, st("m5")); self.spread(fi, fb(both([6, 7])), 86, 104)
            outs = [("s79", 64), ("s80", 0), ("s79", 192), ("s79", 320)]
        else:
            E(83, self.bar, st("m5"))
            outs = [("s79", 0), ("s79", 128), ("s79", 256)]
        nb = len(seq)
        for b in range(nb - 1):
            self.spread(fi, self.gelu_items(ACC(b), *outs[b], f"st{b}"), 28 * (b + 1) + 1, 28 * (b + 2) - 1)
            if b + 2 < nb: fi.setdefault(28 * (b + 2) + 20, []).append(self.f_touchA(f"st{b}", outs[b][0], outs[b][1] * 32))
        self.pipeline(n, 4, rd, mm, ev, fi)
        self.stamp("m6")
        G = self.gelu_items(ACC(nb - 1), *outs[-1], "st")
        if grpB:
            for k, f in enumerate(fb(both([8, 9, 10, 11, 12]))): G.insert(12 * k, f)
        for f in G: f()
        self.finish1([13, 14, 15], int(grpB), [(o[0], o[1] * 32) for o in outs[-2:]])

    def type_q(self):
        a = self.a
        RK, XB, HALO = 106496, 73728, 57344
        RU = 32 * 2688
        KP, VP, QP = 164, 176, 188
        MC, MP, MP0, PM = 196, 200, 204, 244
        rot = lambda u: RK + ((u + 6) % 14) * 4096
        uK = lambda col, u, tag: self.f_dma(4, sWA, "s76", col + u * RU, rot(u), tag)
        uV = lambda u, tag: self.f_dma(4, sWA, "s76", 1792 + u * RU, u * 4096, tag)
        for grpB in range(2):
            self.vm = list(self.vm0); self.lg = []
            a(f"L_Q{'AB'[grpB]}:")
            a(f"s_lshl_b32 s70, s{sG}, 7\ns_lshl_b32 s71, s{sWAVE}, 1\ns_add_u32 s70, s70, s71\ns_sub_u32 s70, s70, 16\ns_mul_i32 s70, s70, 896")
            a("v_lshrrev_b32 v12, 5, v1\nv_mul_u32_u24 v12, 896, v12\nv_and_b32 v13, 31, v1\nv_lshl_add_u32 v5, v13, 4, v12\nv_add_u32 v5, s70, v5")
            a("v_mov_b32 v14, 0x80000000\nv_cmp_gt_u32 vcc, 28, v13\nv_cndmask_b32 v5, v14, v5, vcc")
            for jj in range(2):
                self.vmop(f"buffer_load_dwordx4 {vr(88+4*jj,4)}, v5, {srd(sX)}, 0 offen offset:{448*jj}", f"hx{jj}")
            self.mksrd(sWA, 6, 448 * 2688)
            self.dma_voff(2688)
            a(f"s_mul_i32 s76, s{sNT}, 112")
            if grpB:
                for u in range(4): uK(896, u, "E")()
            self.common_setup()
            a(f"s_and_b32 s81, s{sWAVE}, 1\ns_add_u32 s81, s81, {2*grpB}\ns_bfe_u32 s80, s{sWAVE}, 0x10001")
            a(f"s_lshl_b32 s70, s81, 5\ns_add_u32 s70, s70, {16*grpB}\ns_mul_i32 s70, s70, 896")
            a("v_and_b32 v12, 15, v1\nv_mul_u32_u24 v13, 896, v12\nv_bfe_u32 v12, v1, 1, 3\nv_lshrrev_b32 v14, 4, v1\nv_xor_b32 v12, v12, v14")
            a("v_lshl_add_u32 v10, v12, 4, v13\nv_xor_b32 v12, 4, v12\nv_lshl_add_u32 v11, v12, 4, v13")
            a(f"v_add_u32 v8, s70, v10\nv_add_u32 v9, s70, v11\nv_add_u32 v10, {HALO}, v10\nv_add_u32 v11, {HALO}, v11")
            a("s_mul_i32 s70, s80, 56")
            a("v_lshrrev_b32 v12, 4, v1\nv_bfe_u32 v13, v1, 2, 2\nv_lshl_add_u32 v14, v12, 3, v13\nv_lshlrev_b32 v14, 7, v14")
            a("v_lshrrev_b32 v13, 1, v13\nv_lshlrev_b32 v13, 6, v13\nv_and_b32 v12, 1, v12\nv_lshl_or_b32 v13, v12, 5, v13")
            a("v_and_b32 v12, 3, v1\nv_lshlrev_b32 v12, 3, v12\nv_add_u32 v12, s70, v12")
            a("v_xor_b32 v15, v12, v13\nv_add_u32 v24, v14, v15\nv_add_u32 v12, 32, v12\nv_xor_b32 v15, v12, v13\nv_add_u32 v25, v14, v15")
            a(f"v_add_u32 v26, {RK}, v24\nv_add_u32 v27, {RK}, v25")
            a(f"v_lshrrev_b32 v12, 5, v1\ns_lshl_b32 s70, s{sWAVE}, 1\nv_add_u32 v12, s70, v12\nv_bfe_u32 v13, v12, 1, 3\nv_mul_u32_u24 v12, 896, v12\nv_add_u32 v12, {HALO}, v12")
            a("v_and_b32 v14, 31, v1\nv_xor_b32 v15, v14, v13\nv_lshl_add_u32 v16, v15, 4, v12\nv_add_u32 v14, 28, v14\nv_xor_b32 v15, v14, v13\nv_lshl_add_u32 v17, v15, 4, v12")
            a(f"s_mul_i32 s70, s80, 10240\ns_add_u32 s70, s70, {XB}\nv_add_u32 v18, s70, v2")
            a("s_lshl_b32 s71, s81, 11\nv_add_u32 v28, s71, v18\nv_add_u32 v29, 2048, v28")
            quads = [164, 168, 172, 176, 180, 184, 188, 192, 196, 200, 204]
            pre = [(896 + u * RU, rot(u), "cL") for u in range(8, 14)] + [(1792 + u * RU, u * 4096, "cV") for u in range(5)]
            self.vwr = 250
            if not grpB: a(f"v_add_u32 v250, s{sW1K}, v2\nv_add_u32 v251, 0x10000, v250")
            self.ln_main(False, True)
            self.stats(88, 2, 104, 105, ["hx0", "hx1"])
            self.reduce_dpp([104, 105], True)
            self.ln_scale(104, 105, False)
            a("s_mov_b32 s70, 0x0fffffff\ns_mov_b32 s71, 0x0fffffff")
            for jj in range(2): self.normalize(88 + 4 * jj, 104, 105, 106, 96)
            a("s_mov_b64 exec, s[70:71]")
            for jj in range(2): a(f"ds_write_b128 v{16+jj}, {vr(88+4*jj,4)}")
            a("s_mov_b64 exec, -1")
            if not grpB:
                for u in range(4, 8): uK(896, u, "E")()
                for k, (add, lds, wt) in enumerate(pre): self.f_ld(quads[k], 4, "s76", add, f"r{k}")()
                self.warm()
            self.wait_vm("E")
            wrs = [self.f_wr(quads[k], lds, f"r{k}", wt) for k, (add, lds, wt) in enumerate(pre)]
            self.lg0(); self.bar()
            self.stamp("x1")
            vmq = list(self.vm)
            a(f"s_bitcmp1_b32 s{sWAVE}, 0\ns_cbranch_scc1 L_Q{2*grpB+1}")
            for qt in (2 * grpB, 2 * grpB + 1):
                self.vm = list(vmq); self.lg = []
                self.q_rounds(qt, uK, uV, KP, VP, self.q_consts(MC, MP, MP0, PM), wrs)
                self.finish_q(qt, KP, VP, QP, MC, MP, MP0, PM)

    def q_consts(self, MC, MP, MP0, PM):
        L = []
        def a(t):
            L.append(lambda t=t: self.a(t))
        a("v_and_b32 v12, 15, v1\nv_lshrrev_b32 v13, 4, v1\nv_lshlrev_b32 v13, 2, v13\nv_sub_u32 v12, v12, v13")
        a(f"v_mov_b32 v14, {hx(NEG)}\nv_mov_b32 v15, 0")
        a(f"s_or_b32 s82, s81, s{sG}\ns_cmp_eq_u32 s82, 0\ns_cselect_b32 s78, {hx(NEG)}, 0")
        for r in range(4):
            a(f"v_subrev_u32 v13, {r}, v12\nv_and_b32 v19, 0x80000001, v13")
            a(f"v_cmp_eq_u32 vcc, 0, v19\nv_mov_b32 v20, {'0xffff0000' if r&1 else '0x0000ffff'}\ns_nop 0\nv_cndmask_b32 v{MC+r}, v14, v15, vcc\nv_cndmask_b32 v{21+(r&1)}, v15, v20, vcc")
            a(f"v_cmp_eq_u32 vcc, 0x80000000, v19")
            if r & 1: a(f"v_or_b32 v{PM+2+(r>>1)}, v21, v22")
            a(f"v_cndmask_b32 v{MP+r}, v14, v15, vcc\nv_cndmask_b32 v{252+(r&1)}, v15, v20, vcc")
            if r & 1: a(f"v_or_b32 v{PM+(r>>1)}, v252, v253")
            a(f"v_min_f32 v{MP0+r}, s78, v{MP+r}")
        qs = 28 ** -0.5 * LOG2E
        a(f"v_cmp_gt_u32 vcc, 48, v1\nv_mov_b32 v19, {hx(qs)}\ns_nop 0\nv_cndmask_b32 v20, v15, v19, vcc\nv_cndmask_b32 v21, 0, -1, vcc")
        a("v_lshrrev_b32 v12, 4, v1\nv_and_b32 v13, 15, v1\nv_lshlrev_b32 v13, 4, v13\nv_lshl_add_u32 v22, v12, 9, v13")
        a(f"s_lshl_b32 s79, s{sG}, 2\ns_add_u32 s79, s79, s81\ns_mul_i32 s79, s79, 144\ns_lshl_b32 s83, s{sNT}, 1\ns_add_u32 s82, s80, s83\ns_lshl_b32 s82, s82, 1")
        a(f"s_add_u32 s79, s79, s82\ns_add_u32 s79, s79, 112\ns_lshl_b32 s79, s79, 10\ns_add_u32 s79, s79, {A_BASE}")
        return L

    def q_rounds(self, qt, uK, uV, KP, VP, consts, wrs):
        a = self.a; grpB = qt >> 1
        WF = lambda i, db: 208 + 8 * (i % 3) + 4 * db
        HF = lambda i: 232 + 4 * (i % 3)
        wv = lambda *t: (lambda: self.wait_vm(*t))
        wl = lambda t: (lambda: self.wait_lg(t))
        st = lambda nm: (lambda: self.stamp(nm))
        def xr(tb, s): self.lgop(f"ds_read_b128 {vr(32+4*(14*tb+s),4)}, v{8+(s&1)} offset:{128*(s>>1)+14336*tb}", f"xf{s}")
        a(f"L_Q{qt}:")
        halo = {0: (qt if qt < 2 else None), 1: (qt - 2 if qt >= 2 else None), 2: None}
        def rd(i):
            rnd, s = divmod(i, 14)
            if i < 2: xr(0, i); xr(1, i)
            b0 = 24 if rnd == 1 else 26
            so = s if rnd == 1 else (s + 6) % 14
            for db in range(2):
                for q in range(2):
                    self.lgop(f"ds_read_b64_tr_b16 {vr(WF(i,db)+2*q,2)}, v{b0+db} offset:{4096*so+512*q}", f"w{i}")
            if halo[rnd] is not None:
                self.lgop(f"ds_read_b128 {vr(HF(i),4)}, v{10+(s&1)} offset:{128*(s>>1)}", f"w{i}")
        def mf(rnd, acc, w, x, first):
            aa, bb = (x, w) if rnd == 1 else (w, x)
            a(f"v_mfma_f32_16x16x32_bf16 {vr(acc,4)}, {vr(aa,4)}, {vr(bb,4)}, {'0' if first else vr(acc,4)}")
        def mm(i):
            rnd, s = divmod(i, 14)
            if s == 0 and rnd > 0: pack(rnd - 1)
            self.wait_lg(f"w{i}", f"xf{i}")
            for tb in range(2):
                for db in range(2):
                    mf(rnd, 144 + 8 * tb + 4 * db, WF(i, db), 32 + 4 * (14 * tb + s), s == 0)
            if halo[rnd] is not None: mf(rnd, 160, WF(i, halo[rnd]), HF(i), s == 0)
        def pack(rnd):
            if rnd == 0:
                for tb in range(2):
                    for k in range(4): a(f"v_cvt_pk_bf16_f32 v{KP+4*(tb+1)+k}, v{144+8*tb+2*k}, v{144+8*tb+2*k+1}")
                self.lgop(f"ds_write_b128 v29, {vr(KP+8,4)}", "xw")
            else:
                for tb in range(2):
                    for db in range(2):
                        for k in range(2):
                            r = 144 + 8 * tb + 4 * db + 2 * k
                            a(f"v_cvt_pk_bf16_f32 v{VP+6*db+2+2*tb+k}, v{r}, v{r+1}")
                for db in range(2): self.lgop(f"ds_write_b64 v29, {vr(VP+6*db+4,2)} offset:{1024+8*db}", "xw")
            if halo[rnd] is not None:
                a("v_cvt_pk_bf16_f32 v248, v160, v161\nv_cvt_pk_bf16_f32 v249, v162, v163")
                self.lgop(f"ds_write_b64 v18, v[248:249] offset:{1024*rnd+8*halo[rnd]}", "xw")
        ev = {}; fi = {}
        E = lambda i, *x: ev.setdefault(i, []).extend(x)
        for i in range(3): fi[i] = [lambda tb=tb, s=s: xr(tb, s) for s in range(2 + 4 * i, 6 + 4 * i) for tb in range(2)]
        mine = lambda lo, hi: range(lo + grpB, hi, 2)
        E(4, wl("xf13"), self.bar, st("m0"))
        if not grpB:
            fi.setdefault(4, []).extend(wrs[:4]); fi.setdefault(5, []).extend(wrs[4:6]); self.spread(fi, wrs[6:], 6, 11)
        else:
            self.spread(fi, [uV(u, "cV") for u in range(5, 14)], 4, 9)
        E(6, wl("cL"), self.bar, st("m1"))
        E(11, wv("cV"), wl("cV"), self.bar, st("m2"))
        self.spread(fi, ([lambda: self.cert_load(f"Q{qt}")] if qt == 0 else []) + [uK(0, u, "Q0") for u in mine(0, 8)], 11, 14)
        E(14, self.bar, st("m3"))
        self.spread(fi, [uK(0, u, "Q1") for u in mine(8, 14)], 14, 18)
        fi.setdefault(27, []).append(self.f_touchB())
        E(25, wv("Q0", "#cert"), *([lambda: self.cert_check(f"Q{qt}")] if qt == 0 else []), self.bar, st("m4"))
        def xread():
            self.lgop(f"ds_read_b128 {vr(KP,4)}, v28", "xk")
            for db in range(2): self.lgop(f"ds_read_b64 {vr(VP+6*db,2)}, v28 offset:{1024+8*db}", "xk")
        E(29, wv("Q1"), wl("xw"), self.bar, st("m5"), xread)
        self.spread(fi, [self.f_b(1, s, grpB, "BE") for s in range(8)], 29, 42)
        self.spread(fi, consts, 12, 25)
        self.pipeline(42, 2, rd, mm, ev, fi)
        self.stamp("m6")

    def finish_q(self, qt, KP, VP, QP, MC, MP, MP0, PM):
        a = self.a
        for tb in range(2):
            for db in range(2):
                for k in range(4):
                    r = 144 + 8 * tb + 4 * db + k
                    a(f"v_mul_f32 v{r}, v{19+db}, v{r}")
            for k in range(4): a(f"v_cvt_pk_bf16_f32 v{QP+4*tb+k}, v{144+8*tb+2*k}, v{144+8*tb+2*k+1}")
        self.lg0()
        for tb in range(2):
            a(f"v_mfma_f32_16x16x32_bf16 {vr(144+8*tb,4)}, {vr(KP+4*tb,4)}, {vr(QP+4*tb,4)}, {vr(MP0 if tb==0 else MP,4)}")
            a(f"v_mfma_f32_16x16x32_bf16 {vr(148+8*tb,4)}, {vr(KP+4*tb+4,4)}, {vr(QP+4*tb,4)}, {vr(MC,4)}")
        E_ = 208
        both = lambda f: [a(f(tb, 144 + 8 * tb, E_ + 4 * tb)) for tb in range(2)]
        both(lambda tb, s, e: f"v_max3_f32 v{e}, v{s}, v{s+1}, v{s+4}")
        both(lambda tb, s, e: f"v_max3_f32 v{e+1}, v{s+2}, v{s+3}, v{s+6}")
        both(lambda tb, s, e: f"v_max_f32 v{e}, v{e}, v{s+5}")
        both(lambda tb, s, e: f"v_max_f32 v{e+1}, v{e+1}, v{s+7}")
        both(lambda tb, s, e: f"v_max_f32 v{e+2}, v{e}, v{e+1}")
        for sw in ("16", "32"):
            both(lambda tb, s, e: f"v_mov_b32 v{e+3}, v{e+2}")
            both(lambda tb, s, e: f"v_permlane{sw}_swap_b32 v{e+2}, v{e+3}")
            both(lambda tb, s, e: f"v_max_f32 v{e+2}, v{e+2}, v{e+3}")
        both(lambda tb, s, e: f"v_sub_f32 v{e}, v{e}, v{e+2}")
        both(lambda tb, s, e: f"v_sub_f32 v{e+1}, v{e+1}, v{e+2}")
        both(lambda tb, s, e: f"v_exp_f32 v{e}, v{e}")
        both(lambda tb, s, e: f"v_exp_f32 v{e+1}, v{e+1}")
        both(lambda tb, s, e: f"v_add_f32 v{e+2}, v{e}, v{e+1}")
        for sw in ("16", "32"):
            both(lambda tb, s, e: f"v_mov_b32 v{e+3}, v{e+2}")
            both(lambda tb, s, e: f"v_permlane{sw}_swap_b32 v{e+2}, v{e+3}")
            both(lambda tb, s, e: f"v_add_f32 v{e+2}, v{e+2}, v{e+3}")
        both(lambda tb, s, e: f"v_rcp_f32 v{e+2}, v{e+2}")
        both(lambda tb, s, e: f"v_mul_f32 v{e}, v{e}, v{e+2}")
        both(lambda tb, s, e: f"v_mul_f32 v{e+1}, v{e+1}, v{e+2}")
        both(lambda tb, s, e: f"v_cvt_pk_bf16_f32 v{e}, v{e}, v{e}")
        both(lambda tb, s, e: f"v_cvt_pk_bf16_f32 v{e+1}, v{e+1}, v{e+1}")
        P = 216
        for k in range(4): both(lambda tb, s, e: f"v_and_b32 v{P+4*tb+k}, v{PM+k}, v{e+(k&1)}")
        for tb in range(2):
            for db in range(2):
                a(f"v_mfma_f32_16x16x32_bf16 {vr(144+8*tb+4*db,4)}, {vr(VP+6*db+2*tb,4)}, {vr(P+4*tb,4)}, 0")
        for tb in range(2):
            O = 224 + 4 * tb
            for k in range(4): a(f"v_cvt_pk_bf16_f32 v{O+k}, v{144+8*tb+2*k}, v{144+8*tb+2*k+1}")
            a(f"v_and_b32 v{O+2}, v21, v{O+2}\nv_and_b32 v{O+3}, v21, v{O+3}")
            self.vmop(f"buffer_store_dwordx4 {vr(O,4)}, v22, {srd(sWS)}, s79 offen offset:{256*tb} sc1", "st")
        self.finish1(range(8, 16), qt >> 1, [("s79", 0)])

    def finish1(self, late, half, tl):
        a = self.a
        self.stamp("p1end")
        a(f"s_lshl_b32 s72, s{sG}, 12\ns_lshl_b32 s73, s{sTYPE}, 8\ns_add_u32 s72, s72, s73\ns_lshl_b32 s73, s{sNT}, 5\ns_add_u32 s72, s72, s73")
        a(f"s_lshl_b32 s73, s{sWAVE}, 2\ns_add_u32 s72, s72, s73\ns_add_u32 s72, s72, {FLAG_BASE}\nv_mov_b32 v16, 1\nv_mov_b32 v17, 0")
        def flag():
            a("s_mov_b64 exec, 1")
            self.wait_vm("st")
            self.vmop(f"buffer_store_dword v16, v17, {srd(sWS)}, s72 offen sc1", "fl")
            a("s_mov_b64 exec, -1")
            self.stamp("flag")
        early = self.on("flagfirst")
        if early: flag()
        self.wait_vm("BE"); self.bar()
        self.stamp("z")
        late = list(late)
        for s in late[:3]: self.f_b(1, s, half, "BL")()
        if not early: flag()
        for s in late[3:]: self.f_b(1, s, half, "BL")()
        for s in range(16, 20): self.f_b(2, s, half, "B2")()
        a("s_mov_b64 exec, 0xffff")
        for k in range(2):
            sbase, add = tl[k % len(tl)]
            a(f"s_add_u32 s75, {sbase}, {add}")
            if self.on("touchA"): self.vmop(f"buffer_load_dword v4, v255, {srd(sWS)}, s75 offen sc1", "ta")
        a("s_mov_b64 exec, -1\ns_branch L_P2")

    def phase2(self):
        a = self.a
        sMH, sAB = 76, 77
        a("L_P2:")
        a(f"s_and_b32 s{sMH}, s{sWAVE}, 1")
        a("v_lshrrev_b32 v12, 5, v1\nv_bfe_u32 v13, v1, 2, 2\nv_lshl_add_u32 v14, v12, 2, v13")
        a("v_bfe_u32 v15, v1, 4, 1\nv_lshlrev_b32 v15, 1, v15\nv_bfe_u32 v12, v1, 1, 1\nv_or_b32 v15, v15, v12")
        a("v_lshrrev_b32 v13, 1, v13\nv_lshlrev_b32 v13, 2, v13\nv_xor_b32 v15, v15, v13\nv_lshlrev_b32 v15, 4, v15")
        a("v_and_b32 v12, 1, v1\nv_lshl_or_b32 v15, v12, 3, v15\nv_lshl_add_u32 v5, v14, 7, v15\nv_xor_b32 v8, 64, v5")
        a("v_add_u32 v6, 0x10000, v5\nv_add_u32 v7, 0x20000, v5\nv_add_u32 v9, 0x10000, v8\nv_add_u32 v10, 0x20000, v8")
        a(f"s_lshl_b32 s70, s{sM2}, 1\ns_add_u32 s70, s70, s{sMH}\ns_mul_i32 s{sAB}, s70, {144*1024}\ns_add_u32 s{sAB}, s{sAB}, {A_BASE}")
        a(f"s_lshl_b32 s70, s70, 5\nv_and_b32 v12, 31, v1\nv_add_u32 v12, s70, v12\nv_mul_u32_u24 v3, 896, v12\nv_lshrrev_b32 v12, 5, v1\nv_lshlrev_b32 v12, 4, v12")
        a(f"v_add3_u32 v3, v3, v12, s{sN2B}")
        a(f"s_cmp_ge_u32 s{sWAVE}, 6\ns_cbranch_scc1 L_P2_2\ns_cmp_ge_u32 s{sWAVE}, 4\ns_cbranch_scc1 L_P2_3\ns_cmp_ge_u32 s{sWAVE}, 2\ns_cbranch_scc1 L_P2_1")
        ACC, BR, AF, BF = 96, 128, 32, 16
        RING0 = int(self.opt.get("ring0", 6)); RSTEP = int(self.opt.get("rstep", 2))
        for p in range(4):
            half = p >> 1
            self.vm = ["BL"] + ["B2"] * 4 + (["ta"] * 2 if self.on("touchA") else []); self.lg = []
            a(f"L_P2_{p}:")
            def baddr(slot, sl, nb, q):
                loc = (sl * 2048 + q * 1024) if p < 3 else (28 * (sl >> 1) + 8 * (sl & 1) + 16 * q) * 128
                off = slot * SLOT + loc
                return 5 + 3 * nb + (off >> 16), off & 0xffff
            def b1regs(cs):
                for c in cs:
                    for sl in range(4):
                        for nb in range(2):
                            for q in range(2):
                                vb, imm = baddr(b1_slot(p, c), sl, nb, q)
                                a(f"ds_read_b64_tr_b16 {vr(BR+8*(4*c+sl)+4*nb+2*q,2)}, v{vb} offset:{imm}")
            if p == 0:
                a(f"s_min_u32 s70, s{sN2B}, 768\ns_load_dwordx16 s[4:19], s[{sB2P}:{sB2P+1}], s70\ns_add_u32 s70, s70, 64")
            b1regs([0, 1])
            if p == 0:
                a("v_mov_b32 v29, 0xffff0000\ns_mov_b32 s82, 0\ns_mov_b32 s83, -1\ns_waitcnt lgkmcnt(0)")
                self.unpack_bias(4, ACC)
                a(f"s_load_dwordx16 s[4:19], s[{sB2P}:{sB2P+1}], s70")
            self.vmop(f"buffer_load_dwordx4 v[12:15], v3, {srd(sX)}, 0 offen offset:{32*p}", "xr")
            self.lg0(); self.bar()
            a(f"s_cmp_ge_u32 s{sN2B}, 896\ns_cbranch_scc1 L_FIN")
            for s in range(0, 8): self.f_b(2, s, half, "B2")()
            self.wait_vm("BL"); self.bar()
            self.stamp("y")
            b1regs([2, 3])
            if p == 0: self.unpack_bias(4, ACC + 16)
            self.lg0(); self.bar()
            self.stamp("v")
            def last():
                if half == 0:
                    for s in range(8, 16):
                        for h in range(2): self.f_b(2, s, h, "B2")()
            if p == 0:
                a(f"s_cmp_lg_u32 s{sWAVE}, 0\ns_cbranch_scc1 L_np\ns_mov_b32 s71, 0\ns_lshr_b32 s72, s{sM2}, 1\ns_lshl_b32 s72, s72, 12\ns_add_u32 s72, s72, {FLAG_BASE}\nv_lshlrev_b32 v11, 3, v1")
                a(f"L_poll:\nbuffer_load_dwordx2 v[16:17], v11, {srd(sWS)}, s72 offen sc1\ns_waitcnt vmcnt(0)\nv_and_b32 v16, v16, v17\nv_cmp_ne_u32 vcc, 1, v16\ns_nop 1\ns_cbranch_vccz L_got")
                a("s_add_u32 s71, s71, 1\ns_cmp_ge_u32 s71, 0x40000\ns_cbranch_scc1 L_got\ns_sleep 1\ns_branch L_poll\nL_got:")
                self.stamp("got")
                self.bar()
                vsave = list(self.vm)
                last()
                a("s_branch L_u\nL_np:")
                self.vm = vsave
            last()
            if half: self.wait_vm("B2")
            self.bar()
            if p == 0: a("L_u:")
            if half: self.bar()
            self.stamp("poll")
            nL = P_NL[p]; nst = nL + 16
            order = [("r", k) for k in range(16)] + [("l", k) for k in range(nL)]
            gstep = lambda o: P_FIRST[p] + (o[1] if o[0] == "l" else nL + o[1])
            areg = {}; free = [AF + 4 * k for k in range(16)]; nxt = [0]
            def lda():
                n = nxt[0]
                if n >= nst or not free: return
                areg[n] = free.pop(0); nxt[0] += 1
                a(f"s_add_u32 s74, s{sAB}, {gstep(order[n])*1024}")
                self.vmop(f"buffer_load_dwordx4 {vr(areg[n],4)}, v2, {srd(sWS)}, s74 offen sc1", f"a{n}")
            def rdb(n):
                if order[n][0] != "l": return
                k = order[n][1]
                for nb in range(2):
                    for q in range(2):
                        vb, imm = baddr(B2_SLOT[(p, k // 4)], k % 4, nb, q)
                        self.lgop(f"ds_read_b64_tr_b16 {vr(BF+8*(n&1)+4*nb+2*q,2)}, v{vb} offset:{imm}", f"b{n}")
            for n in range(RING0): lda()
            for n in range(nst):
                if n == 0: self.stamp("iss")
                self.wait_vm(f"a{n}"); self.wait_lg(f"b{n}")
                self.stamp(f"n{n}")
                for nb in range(2):
                    w = BF + 8 * (n & 1) + 4 * nb if order[n][0] == "l" else BR + 8 * order[n][1] + 4 * nb
                    c = "0" if (n == 0 and p != 0) else vr(ACC + 16 * nb, 16)
                    a(f"v_mfma_f32_32x32x16_bf16 {vr(ACC+16*nb,16)}, {vr(w,4)}, {vr(areg[n],4)}, {c}")
                if n == 0 and half == 0: self.bar()
                if n + 2 < nst: rdb(n + 2)
                free.append(areg[n])
                if order[n][0] == "r": free.extend([BR + 8 * order[n][1], BR + 8 * order[n][1] + 4])
                for _ in range(RSTEP): lda()
                if n == [39, 35, 29, 28][p]: self.bar()
            self.stamp("mm")
            a(f"s_lshl_b32 s70, s{sMH}, 15\nv_add_u32 v8, s70, v2")
            a("v_permlane32_swap_b32 v12, v14\nv_permlane32_swap_b32 v13, v15")
            X = 64
            for j in range(4): a(f"v_lshlrev_b32 v{X+2*j}, 16, v{12+j}\nv_and_b32 v{X+2*j+1}, 0xffff0000, v{12+j}")
            for d in range(4):
                if d == p: continue
                for j in range(2): a(f"ds_write_b128 v8, {vr(ACC+8*d+4*j,4)} offset:{(d*4+p)*2048+1024*j}")
            self.lg0(); self.bar()
            R = {}; k = 0
            for src in range(4):
                if src == p: R[src] = ACC + 8 * p; continue
                R[src] = 32 + 8 * k; k += 1
                for j in range(2): a(f"ds_read_b128 {vr(R[src]+4*j,4)}, v8 offset:{(p*4+src)*2048+1024*j}")
            self.lg0()
            T, U = 72, 80
            for k in range(8): a(f"v_add_f32 v{T+k}, v{R[0]+k}, v{R[1]+k}")
            for k in range(8): a(f"v_add_f32 v{T+k}, v{T+k}, v{R[2]+k}")
            for k in range(8): a(f"v_mul_f32 v{U+k}, {hx(-LOG2E)}, v{T+k}")
            for k in range(8): a(f"v_exp_f32 v{U+k}, v{U+k}")
            for k in range(8): a(f"v_mul_f32 v{T+k}, v{T+k}, v{R[3]+k}")
            for k in range(8): a(f"v_add_f32 v{U+k}, 1.0, v{U+k}")
            for k in range(8): a(f"v_rcp_f32 v{U+k}, v{U+k}")
            for k in range(8): a(f"v_fmac_f32 v{X+k}, v{T+k}, v{U+k}")
            for k in range(4): a(f"v_cvt_pk_bf16_f32 v{88+k}, v{X+2*k}, v{X+2*k+1}")
            a("v_permlane32_swap_b32 v88, v90\nv_permlane32_swap_b32 v89, v91")
            a(f"buffer_store_dwordx4 v[88:91], v3, {srd(sOUT)}, 0 offen offset:{32*p}")
            if p < 3: a("s_branch L_FIN")

    def write_stamps(self):
        if not self.stamps: return
        a = self.a
        if self.opt.get("dbg"):
            a("s_waitcnt vmcnt(0)\ns_memrealtime s[100:101]\ns_waitcnt lgkmcnt(0)\ns_not_b32 s84, s84")
            a(f"s_cmp_ge_u32 s{sN2B}, 896\ns_cbranch_scc1 L_END")
            for k in range(9): a(f"v_writelane_b32 v32, s{84+2*k}, {k}")
            a(f"v_lshlrev_b32 v33, 2, v1\ns_mov_b64 exec, 0x1ff\nbuffer_atomic_umax v32, v33, {srd(sDBG)}, 0 offen sc1")
            return
        a("s_waitcnt vmcnt(0)\ns_memrealtime s[100:101]\ns_waitcnt lgkmcnt(0)")
        a(f"s_lshl_b32 s70, s2, 3\ns_add_u32 s70, s70, s{sWAVE}\ns_lshl_b32 s70, s70, 6\nv_mov_b32 v40, s70")
        for k in range(8): a(f"v_mov_b32 v{32+k}, s{84+2*k}")
        a("v_mov_b32 v44, s100\nv_mov_b32 v45, 0\nv_mov_b32 v46, 0\nv_mov_b32 v47, 0\ns_mov_b64 exec, 1")
        a(f"buffer_store_dwordx4 v[32:35], v40, {srd(sWS)}, 0 offen\nbuffer_store_dwordx4 v[36:39], v40, {srd(sWS)}, 0 offen offset:16\nbuffer_store_dwordx4 v[44:47], v40, {srd(sWS)}, 0 offen offset:32")

    def build(self, verbose=False):
        a = self.a
        self.prologue(); self.vm0 = list(self.vm)
        a(f"s_cmp_ge_u32 s{sWAVE}, 4\ns_cbranch_scc1 L_B\ns_cmp_eq_u32 s{sTYPE}, 1\ns_cbranch_scc1 L_QA\ns_branch L_HA\nL_B:\ns_cmp_eq_u32 s{sTYPE}, 1\ns_cbranch_scc1 L_QB\ns_branch L_HB")
        self.type_h(False); self.type_h(True); self.type_q(); self.phase2()
        a("L_FIN:"); self.write_stamps(); a("L_END:\ns_endpgm")
        a.fix_hazards(verbose)
        name = BASE + "_kernel"
        s = "; @launch grid=(256,1,1) block=(512,1,1) lds=163840\n"
        s += '.amdgcn_target "amdgcn-amd-amdhsa--gfx950"\n.text\n'
        s += f".globl {name}\n.p2align 8\n.type {name},@function\n{name}:\n" + a.text()
        s += f""".section .rodata,"a"
.p2align 6
.amdhsa_kernel {name}
  .amdhsa_next_free_vgpr 256
  .amdhsa_next_free_sgpr 102
  .amdhsa_accum_offset 256
  .amdhsa_group_segment_fixed_size 0
  .amdhsa_kernarg_size 88
  .amdhsa_user_sgpr_count 2
  .amdhsa_user_sgpr_kernarg_segment_ptr 1
  .amdhsa_system_sgpr_workgroup_id_x 1
.end_amdhsa_kernel
"""
        return s

if __name__ == "__main__":
    out = sys.argv[1]
    st = sys.argv[2].split(",") if len(sys.argv) > 2 and sys.argv[2] != "-" else None
    opt = {}
    for k in os.environ.get("OPT", "").split(","):
        if "=" in k: kk, vv = k.split("="); opt[kk] = vv
        elif k: opt[k] = True
    open(out, "w").write(Gen(st, opt).build(verbose=len(sys.argv) > 3))
```

```python
import sys, struct, math, os
sys.path.insert(0, "gen")
from asmlib import Asm

BASE = "recurrent_scan__sliding_local_dilated__mixer_channel_mlp__prompt"
f2u = lambda x: struct.unpack("<I", struct.pack("<f", x))[0]
hx = lambda x: "0x%08x" % f2u(x)

A_BASE = 0x100000
FLAG_BASE = 0x40000
LOG2E = 1.4426950408889634
NEG = -1.0e30
SLOT = 8192

sX, sWA, sWS, sDBG, sW2, sWO, sOUT = 28, 32, 36, 40, 44, 48, 52
sB2P = 58
sWAVE, sG, sNT, sTYPE, sM2, sN2B, sW1K = 60, 61, 62, 63, 64, 65, 66
sONES, sC2, sI = 67, 68, 69
vB, vT, vCA, vC = 31, 254, 23, 30
srd = lambda b: f"s[{b}:{b+3}]"
vr = lambda b, n: f"v[{b}:{b+n-1}]" if n > 1 else f"v{b}"

P_FIRST = [0, 40, 76, 112]; P_NL = [24, 20, 20, 16]
def b1_src(p, c): return (sWO, 224 + 56 * c) if p == 3 else (sW2, 16 * (P_FIRST[p] + P_NL[p]) + 64 * c)
def b2_src(p, c): return (sWO, 56 * c) if p == 3 else (sW2, 16 * P_FIRST[p] + 64 * c)
def b1_slot(p, c): return 2 * p + c if c < 2 else 8 + 2 * p + (c - 2)
B2_SLOT = {}
for _p in range(4):
    B2_SLOT[(_p, 0)] = 16 + _p; B2_SLOT[(_p, 1)] = 2 * _p; B2_SLOT[(_p, 2)] = 2 * _p + 1; B2_SLOT[(_p, 3)] = 8 + _p
B2_SLOT[(0, 4)] = 12; B2_SLOT[(1, 4)] = 13; B2_SLOT[(2, 4)] = 14; B2_SLOT[(0, 5)] = 15
B1_BY_SLOT = {b1_slot(p, c): (p, c) for p in range(4) for c in range(4)}
B2_BY_SLOT = {v: k for k, v in B2_SLOT.items()}

class Gen:
    def __init__(self, stamps=None, opt=None):
        self.a = Asm(); self.stamps = stamps; self.opt = opt or {}
        self.vm = []; self.lg = []; self.npc = 0
    def on(self, k): return bool(self.opt.get(k)) if k in ("touchA", "pages", "ft", "flagfirst") else not self.opt.get("no_" + k)
    def vmop(self, text, tag): self.a(text); self.vm.append(tag)
    def lgop(self, text, tag): self.a(text); self.lg.append(tag)
    def _idx(self, lst, tags): return max([i for i, t in enumerate(lst) if t in tags], default=-1)
    def wait_vm(self, *tags):
        idx = self._idx(self.vm, tags)
        if idx < 0: return
        n = sum(1 for t in self.vm[idx + 1:] if not t.startswith("#"))
        self.a(f"s_waitcnt vmcnt({min(n,63)})"); self.vm = self.vm[idx + 1:]
    def wait_lg(self, *tags):
        idx = self._idx(self.lg, tags)
        if idx < 0: return
        self.a(f"s_waitcnt lgkmcnt({min(len(self.lg)-1-idx,15)})"); self.lg = self.lg[idx + 1:]
    def lg0(self): self.a("s_waitcnt lgkmcnt(0)"); self.lg = []
    def stamp(self, name):
        if self.stamps and name in self.stamps:
            k = self.stamps.index(name); self.a(f"s_memrealtime s[{84+2*k}:{85+2*k}]")
        if self.stamps and "c" + name in self.stamps:
            k = self.stamps.index("c" + name); self.a(f"s_memtime s[{84+2*k}:{85+2*k}]")
    def mksrd(self, d, b, n):
        self.a(f"s_mov_b32 s{d}, s{b}\ns_mov_b32 s{d+1}, s{b+1}\ns_mov_b32 s{d+2}, {n}\ns_mov_b32 s{d+3}, 0x20000")
    def bar(self): self.a("s_barrier")

    def prologue(self):
        a = self.a
        a("s_cmp_ge_u32 s2, 256\ns_cbranch_scc1 L_END")
        self.stamp("start")
        a("s_load_dwordx16 s[4:19], s[0:1], 0\ns_load_dwordx4 s[20:23], s[0:1], 64\ns_load_dwordx2 s[24:25], s[0:1], 80")
        a("v_and_b32 v1, 63, v0\nv_lshrrev_b32 v12, 6, v0\nv_lshlrev_b32 v2, 4, v1")
        a(f"v_readfirstlane_b32 s{sWAVE}, v12")
        a(f"s_and_b32 s70, s2, 7\ns_lshr_b32 s{sI}, s2, 3")
        if not self.opt.get("newmap") and not self.opt.get("midmap"):
            a(f"s_and_b32 s{sG}, s70, 1\ns_lshl_b32 s{sG}, s{sG}, 3\ns_and_b32 s72, s{sI}, 7\ns_add_u32 s{sG}, s{sG}, s72")
            a(f"s_and_b32 s{sNT}, s70, 6\ns_lshr_b32 s72, s{sI}, 4\ns_add_u32 s{sNT}, s{sNT}, s72\ns_bfe_u32 s{sTYPE}, s{sI}, 0x10003")
        elif self.opt.get("midmap"):
            a(f"s_lshr_b32 s{sG}, s70, 1\ns_lshl_b32 s{sG}, s{sG}, 2\ns_and_b32 s72, s{sI}, 3\ns_add_u32 s{sG}, s{sG}, s72")
            a(f"s_and_b32 s{sNT}, s70, 1\ns_lshl_b32 s{sNT}, s{sNT}, 2\ns_lshr_b32 s72, s{sI}, 4\ns_lshl_b32 s72, s72, 1\ns_add_u32 s{sNT}, s{sNT}, s72\ns_bfe_u32 s72, s{sI}, 0x10002\ns_add_u32 s{sNT}, s{sNT}, s72\ns_bfe_u32 s{sTYPE}, s{sI}, 0x10003")
        else:
            a(f"s_lshl_b32 s{sG}, s70, 1\ns_lshr_b32 s72, s{sI}, 4\ns_add_u32 s{sG}, s{sG}, s72")
            a(f"s_and_b32 s{sNT}, s{sI}, 7\ns_bfe_u32 s{sTYPE}, s{sI}, 0x10003")
        a(f"s_lshl_b32 s{sM2}, s70, 2\ns_and_b32 s73, s{sI}, 3\ns_add_u32 s{sM2}, s{sM2}, s73\ns_lshr_b32 s72, s{sI}, 2\ns_lshl_b32 s{sN2B}, s72, 7")
        a(f"s_mov_b32 s{sONES}, 0x3f803f80\ns_and_b32 s{sW1K}, s{sWAVE}, 3\ns_lshl_b32 s{sW1K}, s{sW1K}, 10")
        a(f"v_lshrrev_b32 v3, 3, v0\ns_lshl_b32 s70, s{sWAVE}, 3\nv_add_u32 v3, s70, v3\nv_mul_u32_u24 v3, 896, v3")
        a("v_and_b32 v12, 7, v0\nv_lshl_add_u32 v3, v12, 4, v3")
        a(f"s_mul_i32 s70, s{sG}, {128*896}\ns_add_u32 s71, s70, {8*896}")
        a(f"s_lshl_b32 s72, s{sG}, 2\ns_mul_i32 s72, s72, {144*1024}\ns_add_u32 s72, s72, {A_BASE}\ns_lshl_b32 s73, s{sM2}, 1\ns_mul_i32 s73, s73, {144*1024}\ns_add_u32 s73, s73, {A_BASE}")
        a("s_waitcnt lgkmcnt(0)")
        self.mksrd(sX, 4, 2048 * 896)
        for grp in range(2):
            for j in range(7):
                self.vmop(f"buffer_load_dwordx4 {vr(32+(grp*7+j)*4,4)}, v3, {srd(sX)}, s{70+grp} offen offset:{128*j}", f"x{grp}{j}")
        a("s_mov_b64 s[10:11], s[6:7]")
        self.stamp("xiss")
        if self.on("pages"):
            a(f"s_cmp_lt_u32 s{sWAVE}, {int(self.opt.get('pw', 0))}\ns_cbranch_scc1 L_nopg")
            for b in (12, 6, 14, 22, 16, 8, 20, 18): a(f"s_load_dword s26, s[{b}:{b+1}], 0")
            a(f"s_load_dword s26, s[24:25], {FLAG_BASE}\ns_load_dword s26, s[24:25], s72\ns_load_dword s26, s[24:25], s72 offset:{4*144*1024-4}\ns_load_dword s26, s[24:25], s73\ns_load_dword s26, s[24:25], s73 offset:{2*144*1024-4}")
            a("L_nopg:")

    def first_touch(self, soff):
        if not self.on("ft"): return
        self.a("s_mov_b64 exec, 1")
        self.vmop(f"buffer_load_dword v{vT}, v4, {srd(sWA)}, {soff} offen", "ft")
        self.a("s_mov_b64 exec, -1")

    def warm(self):
        if not self.on("warm"): return
        a = self.a
        a("s_getpc_b64 s[72:73]\nL_pc%d:\ns_sub_u32 s72, s72, L_pc%d-%s_kernel\ns_subb_u32 s73, s73, 0" % (self.npc, self.npc, BASE)); self.npc += 1
        a(f"s_lshl_b32 s70, s{sI}, 11\ns_lshr_b32 s71, s{sW1K}, 1\ns_add_u32 s70, s70, s71\nv_and_b32 v12, 3, v1\nv_lshlrev_b32 v12, 7, v12\nv_add_u32 v12, s70, v12\ns_mov_b32 s70, L_END-{BASE}_kernel\nv_min_u32 v12, s70, v12\ns_mov_b64 exec, 15")
        self.vmop(f"global_load_dword v{vT}, v12, s[72:73]", "warm")
        a("s_mov_b64 exec, -1")
        T = [(12, 6272), (8, 1568), (16, 6272), (10, 4704)]
        for w, (b, sl) in enumerate(T):
            a(f"s_cmp_eq_u32 s{sWAVE}, {w}\ns_cselect_b64 s[72:73], s[{b}:{b+1}], s[72:73]\ns_cselect_b32 s70, {sl}, s70")
        a(f"s_sub_u32 s71, s70, 4\ns_mul_i32 s70, s70, s2\nv_min_u32 v12, s71, v255\nv_add_u32 v12, s70, v12")
        self.vmop(f"global_load_dword v{vT}, v12, s[72:73]", "warm")

    def common_setup(self):
        a = self.a
        self.mksrd(sWS, 24, 1 << 28); self.mksrd(sDBG, 22, 256); self.mksrd(sW2, 16, 1792 * 896); self.mksrd(sWO, 8, 448 * 896); self.mksrd(sOUT, 20, 2048 * 896)
        a(f"s_mov_b64 s[{sB2P}:{sB2P+1}], s[18:19]")
        a(f"v_lshlrev_b32 v{vCA}, 2, v1\nv_and_b32 v{vCA}, 63, v{vCA}\nv_lshlrev_b32 v255, 7, v1")
        a(f"v_bfe_u32 v12, v0, 3, 5\nv_mul_u32_u24 v{vB}, 896, v12\nv_lshrrev_b32 v13, 2, v1\nv_and_b32 v13, 4, v13\nv_and_b32 v12, 7, v1\nv_xor_b32 v12, v12, v13\nv_lshl_add_u32 v{vB}, v12, 4, v{vB}")

    def f_dma(self, voff, srdb, sbase, add, lds, tag):
        def f():
            self.a(f"s_add_u32 m0, s{sW1K}, {lds}\ns_add_u32 s74, {sbase}, {add}")
            self.vmop(f"buffer_load_dwordx4 v{voff}, {srd(srdb)}, s74 offen lds", tag)
        return f
    def f_b(self, which, slot, half, tag):
        p, c = (B1_BY_SLOT if which == 1 else B2_BY_SLOT)[slot]
        sr, row = (b1_src if which == 1 else b2_src)(p, c)
        return self.f_dma(vB, sr, f"s{sN2B}", (row + 32 * half) * 896, slot * SLOT + 4096 * half, tag)

    def dma_voff(self, stride):
        a = self.a
        a(f"v_bfe_u32 v12, v0, 3, 5\nv_mul_u32_u24 v4, {stride}, v12")
        a(f"v_lshrrev_b32 v13, 2, v1\nv_and_b32 v13, 4, v13\ns_and_b32 s70, s{sWAVE}, 1\ns_lshl_b32 s70, s70, 1\nv_or_b32 v13, s70, v13")
        a("v_and_b32 v12, 7, v1\nv_xor_b32 v12, v12, v13\nv_lshl_add_u32 v4, v12, 4, v4")

    def touches(self, rowbytes):
        if not self.on("touchW"): return
        a = self.a
        n1 = (28 * rowbytes + 8191) // 8192
        a(f"s_lshr_b32 s70, s{sI}, 4\ns_lshl_b32 s71, s{sNT}, 1\ns_add_u32 s70, s70, s71\ns_mul_i32 s70, s70, {28*rowbytes}\ns_lshl_b32 s71, s{sW1K}, 3\ns_add_u32 s70, s70, s71")
        for k in range((n1 + 3) // 4):
            self.vmop(f"buffer_load_dword v{vT}, v255, {srd(sWA)}, s70 offen sc1", "tw"); a("s_add_u32 s70, s70, 32768")
        a(f"s_mul_i32 s70, s{sI}, {56*896}\ns_add_u32 s70, s70, s71")
        for k in range(2):
            self.vmop(f"buffer_load_dword v{vT}, v255, {srd(sW2)}, s70 offen sc1", "tw"); a("s_add_u32 s70, s70, 32768")
        a(f"s_mul_i32 s70, s{sI}, {14*896}\ns_lshr_b32 s71, s71, 1\ns_add_u32 s70, s70, s71")
        self.vmop(f"buffer_load_dword v{vT}, v255, {srd(sWO)}, s70 offen sc1", "tw")

    def f_touchB(self):
        def f():
            if not self.on("touchB"): return
            an = self.a
            an(f"v_mul_u32_u24 v253, 7, v255\ns_and_b32 s75, s{sM2}, 3\ns_lshl_b32 s75, s75, 3\ns_add_u32 s75, s75, s{sWAVE}\ns_lshl_b32 s74, s75, 5")
            an("s_cmp_ge_u32 s75, 12\ns_cselect_b32 s73, 256, 0\ns_add_u32 s74, s74, s73\ns_cmp_ge_u32 s75, 22\ns_cselect_b32 s73, 256, 0\ns_add_u32 s74, s74, s73")
            an(f"s_mul_i32 s74, s74, 896\ns_add_u32 s74, s74, s{sN2B}\ns_mov_b64 exec, 0xffffffff")
            self.vmop(f"buffer_load_dword v{vT}, v253, {srd(sW2)}, s74 offen sc1", "tb")
            an(f"s_mul_i32 s74, s75, {8*896}\ns_add_u32 s74, s74, s{sN2B}\ns_mov_b64 exec, 0xff")
            self.vmop(f"buffer_load_dword v{vT}, v253, {srd(sWO)}, s74 offen sc1", "tb")
            an("s_mov_b64 exec, -1")
        return f

    def f_touchA(self, tag, sbase, add):
        def f():
            if not self.on("touchA"): return
            self.wait_vm(tag)
            self.a(f"s_add_u32 s75, {sbase}, {add}\ns_mov_b64 exec, 0xffff")
            self.vmop(f"buffer_load_dword v{vT}, v255, {srd(sWS)}, s75 offen sc1", "ta")
            self.a("s_mov_b64 exec, -1")
        return f

    def reduce_dpp(self, regs, wide):
        a = self.a
        steps = ["quad_perm:[1,0,3,2]", "quad_perm:[2,3,0,1]", "row_half_mirror"] + (["row_mirror"] if wide else [])
        for st in steps:
            for r in regs: a(f"v_add_f32_dpp v{r}, v{r}, v{r} {st} row_mask:0xf bank_mask:0xf")
        if wide:
            for r in regs: a(f"v_mov_b32 v{r+4}, v{r}")
            for r in regs: a(f"v_permlane16_swap_b32 v{r}, v{r+4}")
            for r in regs: a(f"v_add_f32 v{r}, v{r}, v{r+4}")

    def ln_scale(self, s1, s2, second):
        a = self.a; t = s2 + 1
        a(f"v_mul_f32 v{s1}, {hx(1/448)}, v{s1}\nv_mul_f32 v{s2}, {hx(1/448)}, v{s2}")
        a(f"v_fma_f32 v{s2}, -v{s1}, v{s1}, v{s2}\nv_max_f32 v{s2}, 0, v{s2}")
        a(f"v_add_f32 v{t}, {hx(1e-5)}, v{s2}\nv_rsq_f32 v{t}, v{t}")
        if second:
            a(f"v_mul_f32 v{s2}, v{s2}, v{t}\nv_mul_f32 v{s2}, v{s2}, v{t}\nv_add_f32 v{s2}, {hx(1e-5)}, v{s2}\nv_rsq_f32 v{s2}, v{s2}")
            a(f"v_mul_f32 v{t}, v{t}, v{s2}")
        a(f"v_cvt_pk_bf16_f32 v{t}, v{t}, 0\nv_lshlrev_b32 v{s2}, 16, v{t}")
        a(f"v_mul_f32 v{t+1}, v{s1}, v{s2}\nv_mov_b32 v{s1}, v{t}\nv_sub_f32 v{t}, 0, v{t+1}")

    def stats(self, base, n, s1, s2, tags):
        a = self.a
        a(f"v_mov_b32 v{s1}, 0\nv_mov_b32 v{s2}, 0")
        for j in range(n):
            self.wait_vm(tags[j])
            for k in range(4):
                r = base + 4 * j + k
                a(f"v_dot2c_f32_bf16 v{s1}, s{sONES}, v{r}\nv_dot2c_f32_bf16 v{s2}, v{r}, v{r}")

    def normalize(self, base, clo, chi, nm, tmp):
        a = self.a
        for k in range(4):
            a(f"v_dot2_f32_bf16 v{tmp+2*k}, v{base+k}, v{clo}, v{nm}\nv_dot2_f32_bf16 v{tmp+2*k+1}, v{base+k}, v{chi}, v{nm}")
        for k in range(4):
            a(f"v_cvt_pk_bf16_f32 v{base+k}, v{tmp+2*k}, v{tmp+2*k+1}")

    def ln_main(self, second, qtype, after_st0=()):
        a = self.a
        a(f"v_lshrrev_b32 v12, 3, v1\ns_lshl_b32 s70, s{sWAVE}, 4")
        if qtype: a(f"s_and_b32 s71, s{sWAVE}, 4\ns_lshl_b32 s71, s71, 2\ns_add_u32 s70, s70, s71")
        a("v_add_u32 v12, s70, v12\nv_mul_u32_u24 v12, 896, v12")
        a("v_lshrrev_b32 v13, 4, v1\nv_and_b32 v14, 7, v1\nv_xor_b32 v13, v13, v14")
        a(f"v_lshl_add_u32 v6, v13, 4, v12\nv_xor_b32 v13, 4, v13\nv_lshl_add_u32 v7, v13, 4, v12\nv_add_u32 v7, {8*896}, v7")
        self.stamp("setup")
        S = [(104, 105), (112, 113)]
        for grp in range(2):
            s1, s2 = S[grp]
            self.stats(32 + grp * 28, 7, s1, s2, [f"x{grp}{j}" for j in range(7)])
            self.stamp(f"st{grp}")
            if grp == 0:
                for f in after_st0: f()
            self.reduce_dpp([s1, s2], False)
            self.ln_scale(s1, s2, second)
            for j in range(7):
                b = 32 + (grp * 7 + j) * 4
                self.normalize(b, s1, s2, s2 + 1, 96)
                a(f"ds_write_b128 v{6+grp}, {vr(b,4)} offset:{128*j}")
        self.stamp("lnend")

    def f_ld(self, dst, voff, sbase, add, tag):
        def f():
            self.a(f"s_add_u32 s74, {sbase}, {add}")
            self.vmop(f"buffer_load_dwordx4 {vr(dst,4)}, v{voff}, {srd(sWA)}, s74 offen", tag)
        return f
    def f_wr(self, src, lds, tag, wtag):
        def f():
            self.wait_vm(tag)
            self.lgop(f"ds_write_b128 v{self.vwr + (lds >> 16)}, {vr(src,4)} offset:{lds & 0xffff}", wtag)
        return f

    def cert_load(self, L):
        self.a(f"s_cmp_lg_u32 s{sWAVE}, 0\ns_cbranch_scc1 L_nc{L}\nbuffer_load_dword v{vC}, v{vCA}, {srd(sDBG)}, 0 offen offset:64 sc1\nL_nc{L}:")
        self.vm.append("#cert")
    def cert_check(self, L):
        a = self.a
        a(f"s_cmp_lg_u32 s{sWAVE}, 0\ns_cbranch_scc1 L_cok{L}\ns_mov_b32 s71, 0")
        a(f"L_cert{L}:\nv_cmp_eq_u32 vcc, 0, v{vC}\ns_nop 1\ns_cbranch_vccz L_cok{L}")
        a(f"s_add_u32 s71, s71, 1\ns_cmp_ge_u32 s71, 0x40000\ns_cbranch_scc1 L_cok{L}\ns_sleep 2\nbuffer_load_dword v{vC}, v{vCA}, {srd(sDBG)}, 0 offen offset:64 sc1\ns_waitcnt vmcnt(0)\ns_branch L_cert{L}\nL_cok{L}:")

    def unpack_bias(self, sb, acc):
        a = self.a
        for hh in range(2):
            if hh: a("s_mov_b64 exec, s[82:83]")
            for j in range(4):
                for k in range(2):
                    s = sb + 4 * j + 2 * hh + k
                    a(f"v_lshlrev_b32 v{acc+4*j+2*k}, 16, s{s}\nv_and_b32 v{acc+4*j+2*k+1}, s{s}, v29")
        a("s_mov_b64 exec, -1")

    def pipeline(self, n, depth, rd, mm, events, fillers):
        nxt = 0; hold = False
        while nxt < min(depth, n): rd(nxt); nxt += 1
        for i in range(n):
            while nxt <= i: rd(nxt); nxt += 1
            mm(i)
            for e in events.get(i, []):
                if e == "hold": hold = True
                elif e == "go": hold = False
                else: e()
            while not hold and nxt < min(i + 1 + depth, n): rd(nxt); nxt += 1
            for f in fillers.get(i, []): f()

    @staticmethod
    def spread(fillers, items, lo, hi):
        n = hi - lo
        for k, it in enumerate(items):
            fillers.setdefault(lo + k * n // len(items), []).append(it)

    def gelu_items(self, acc, sbase, add, tag):
        a = self.a; L = []
        I = lambda s: L.append(lambda s=s: a(s))
        T = lambda k: (232, 233, 234, 235, 236, 237, 238, 239, 248, 249)[k % 10]
        stage = [
            lambda k: f"v_mul_f32 v{T(k)}, v{acc+k}, v{acc+k}",
            lambda k: f"v_fma_f32 v{T(k)}, v{T(k)}, s{sC2}, v27",
            lambda k: f"v_mul_f32 v{T(k)}, v{T(k)}, v{acc+k}",
            lambda k: f"v_exp_f32 v{T(k)}, v{T(k)}",
            lambda k: f"v_add_f32 v{T(k)}, 1.0, v{T(k)}",
            lambda k: f"v_rcp_f32 v{T(k)}, v{T(k)}",
            lambda k: f"v_mul_f32 v{T(k)}, v{acc+k}, v{T(k)}",
        ]
        for t in range(16 + 7):
            k = t - 7
            if 0 <= k < 16 and k & 1:
                I(f"v_cvt_pk_bf16_f32 v{240+(k>>1)}, v{T(k-1)}, v{T(k)}")
                if k & 7 == 7:
                    def st(h=k >> 3):
                        a(f"s_add_u32 s75, {sbase}, {add*32+1024*h}")
                        self.vmop(f"buffer_store_dwordx4 {vr(240+4*h,4)}, v2, {srd(sWS)}, s75 offen sc1", tag)
                    L.append(st)
            for sg in (6, 3, 4, 2, 5, 1, 0):
                k = t - sg
                if 0 <= k < 16: I(stage[sg](k))
        return L

    def type_h(self, grpB):
        a = self.a; L = "HB" if grpB else "HA"
        RD, R1 = 106496, 49152
        RU = 32 * 3584
        self.vm = list(self.vm0); self.lg = []
        a(f"L_{L}:")
        self.mksrd(sWA, 12, 448 * 3584); self.mksrd(4, 14, 3584)
        a(f"s_lshr_b32 s70, s{sNT}, 1\ns_mul_i32 s70, s70, 896\ns_and_b32 s71, s{sNT}, 1\ns_lshl_b32 s76, s71, 9\ns_add_u32 s76, s76, s70")
        a("s_lshl_b32 s77, s71, 6\ns_add_u32 s77, s77, s70\ns_add_u32 s77, s77, 384")
        if grpB: blocks = [("s76", 0), ("s76", 128), ("s76", 256)]
        else: blocks = [("s76", 64), ("s77", 0), ("s76", 192), ("s76", 320)]
        self.dma_voff(3584)
        rot = lambda u: RD + ((u + 2) % 14) * 4096
        uD = lambda col, u, tag: self.f_dma(4, sWA, "s76", col + u * RU, rot(u), tag)
        a("v_and_b32 v29, 31, v1\nv_lshlrev_b32 v29, 1, v29")
        def bias():
            for b, (sb, off) in enumerate(blocks):
                self.vmop(f"buffer_load_ushort v{184+2*b}, v29, s[4:7], {sb} offen offset:{off}", "bias")
        if grpB: self.first_touch("s76")
        self.common_setup()
        if grpB:
            a(f"s_lshl_b32 s78, s{sNT}, 3\ns_add_u32 s78, s78, s{sWAVE}\ns_cmp_lg_u32 s78, 7\ns_cbranch_scc1 L_nolead1")
            a(f"s_lshl_b32 s70, s{sG}, 12\ns_add_u32 s70, s70, {FLAG_BASE}\nv_lshlrev_b32 v12, 3, v1\nv_mov_b32 v14, 0\nv_mov_b32 v15, 0")
            a(f"buffer_store_dwordx2 v[14:15], v12, {srd(sWS)}, s70 offen sc1\nL_nolead1:")
        a(f"v_bfe_u32 v12, v0, 2, 6\nv_mul_u32_u24 v5, 3584, v12\nv_and_b32 v12, 3, v1\nv_lshl_add_u32 v5, v12, 4, v5")
        c1 = -2.0 * math.sqrt(2.0 / math.pi) * LOG2E
        a(f"v_mov_b32 v27, {hx(c1)}\ns_mov_b32 s{sC2}, {hx(c1*0.044715)}")
        a("v_cmp_gt_u32 vcc, 32, v1\nv_mov_b32 v12, 0x3f80\nv_mov_b32 v177, 0\nv_cndmask_b32 v176, 0, v12, vcc\nv_mov_b32 v178, 0\nv_mov_b32 v179, 0")
        for r in (185, 187, 189, 191, 192, 193): a(f"v_mov_b32 v{r}, 0")
        if grpB: a("v_mov_b32 v190, 0")
        a(f"v_and_b32 v12, 31, v1\ns_and_b32 s70, s{sWAVE}, 3\ns_lshl_b32 s70, s70, 5\nv_add_u32 v13, s70, v12\nv_mul_u32_u24 v13, 896, v13")
        a("v_bfe_u32 v12, v1, 1, 3\nv_lshrrev_b32 v14, 5, v1\nv_xor_b32 v12, v12, v14")
        for i in range(4):
            a(f"v_xor_b32 v14, {2*i}, v12\nv_lshl_add_u32 v{8+i}, v14, 4, v13")
        a("v_lshrrev_b32 v12, 5, v1\nv_bfe_u32 v13, v1, 2, 2\nv_lshl_add_u32 v14, v12, 3, v13")
        a("v_bfe_u32 v15, v1, 4, 1\nv_lshlrev_b32 v15, 1, v15\nv_bfe_u32 v16, v1, 1, 1\nv_or_b32 v15, v15, v16")
        a("v_lshrrev_b32 v16, 1, v13\nv_lshlrev_b32 v16, 2, v16\nv_lshl_or_b32 v16, v12, 1, v16")
        a(f"v_xor_b32 v16, v15, v16\nv_xor_b32 v16, {0 if grpB else 4}, v16\nv_lshlrev_b32 v16, 4, v16")
        a("v_and_b32 v17, 1, v1\nv_lshl_or_b32 v16, v17, 3, v16\nv_lshl_add_u32 v24, v14, 7, v16")
        a(f"v_add_u32 v25, {R1}, v24\nv_add_u32 v24, {RD}, v24")
        a(f"v_lshlrev_b32 v15, 4, v15\nv_lshl_or_b32 v15, v17, 3, v15\nv_lshl_add_u32 v26, v14, 6, v15")
        a(f"s_and_b32 s70, s{sWAVE}, 3\ns_lshl_b32 s71, s{sG}, 2\ns_add_u32 s71, s71, s70\ns_mul_i32 s71, s71, {144*1024}\ns_add_u32 s71, s71, {A_BASE}")
        a("s_lshl_b32 s79, s76, 5\ns_add_u32 s79, s79, s71\ns_lshl_b32 s80, s77, 5\ns_add_u32 s80, s80, s71")
        quads = [160, 164, 168, 172, 180, 196, 200, 204, 232, 236, 240, 244, 248]
        ND1 = int(self.opt.get("nd1", 10)); NS = int(self.opt.get("ns", 0))
        pre = [(4, "s76", u * RU, rot(u), "cL") for u in (12, 13)]
        for g in range(7):
            if g < NS: pre.append((5, "s77", g * 64 * 3584, g * 4096, f"c{g}"))
            for u in (2 * g, 2 * g + 1):
                if u < ND1: pre.append((4, "s76", 128 + u * RU, R1 + u * 4096, f"c{g}"))
        self.vwr = 18
        if not grpB: a(f"v_add_u32 v18, s{sW1K}, v2\nv_add_u32 v19, 0x10000, v18")
        self.ln_main(True, False)
        if not grpB:
            for u in range(4): uD(0, u, "E0")()
            for u in range(4, 12): uD(0, u, "E")()
            self.stamp("a_e")
            for k, (vo, sb, add, lds, wt) in enumerate(pre): self.f_ld(quads[k], vo, sb, add, f"r{k}")()
            self.stamp("a_stg")
            if not self.on("warmlate"): self.warm()
            self.stamp("a_warm")
            self.wait_vm("E0")
            self.stamp("a_wait")
        else:
            a("s_waitcnt vmcnt(0)"); self.vm = []
            a("s_cmp_lg_u32 s78, 7\ns_cbranch_scc1 L_nolead2")
            a(f"s_lshl_b32 s70, s{sG}, 2\nv_mov_b32 v12, s70\nv_mov_b32 v13, 1\ns_mov_b64 exec, 1")
            a(f"buffer_store_dword v13, v12, {srd(sDBG)}, 0 offen offset:64 sc1\ns_mov_b64 exec, -1\nL_nolead2:")
        self.lg0(); self.bar()
        self.stamp("x1")
        WF = lambda i: 208 + 4 * (i % 6)
        adS = lambda s, q: (26, 1024 * s + 256 * q)
        adD = lambda s, q: (24, 2048 * ((s + 4) % 28) + 512 * q)
        ad1 = lambda s, q: (25, 2048 * s + 512 * q)
        seq = [adD, ad1, adD] if grpB else [adD, adS, ad1, adD]
        n = 28 * len(seq)
        ACC = lambda b: 144 + 16 * (b & 1)
        def xr(s): self.lgop(f"ds_read_b128 {vr(32+4*s,4)}, v{8+(s&3)} offset:{128*(s>>2)}", f"xf{s}")
        def rd(i):
            b, s = divmod(i, 28)
            if i < 4: xr(i)
            for q in range(2):
                vb, imm = seq[b](s, q)
                self.lgop(f"ds_read_b64_tr_b16 {vr(WF(i)+2*q,2)}, v{vb} offset:{imm}", f"w{i}")
        def mm(i):
            b, s = divmod(i, 28); acc = ACC(b)
            self.wait_lg(f"w{i}", f"xf{i}")
            a(f"v_mfma_f32_32x32x16_bf16 {vr(acc,16)}, {vr(WF(i),4)}, {vr(32+4*s,4)}, {'0' if s == 0 else vr(acc,16)}")
            if s == 26:
                self.wait_vm("bias")
                a(f"v_mfma_f32_32x32x16_bf16 {vr(acc,16)}, {vr(184+2*b,4)}, v[176:179], {vr(acc,16)}")
        ev = {}; fi = {}
        E = lambda i, *x: ev.setdefault(i, []).extend(x)
        wv = lambda *t: (lambda: self.wait_vm(*t))
        wl = lambda t: (lambda: self.wait_lg(t))
        st = lambda nm: (lambda: self.stamp(nm))
        for i in range(5): fi[i] = [lambda s=s: xr(s) for s in range(4 + 5 * i, min(28, 9 + 5 * i))]
        uS = lambda u, tag: self.f_dma(5, sWA, "s77", u * 64 * 3584, u * 4096, tag)
        u1 = lambda u, tag: self.f_dma(4, sWA, "s76", 128 + u * RU, R1 + u * 4096, tag)
        fb = lambda units: [self.f_b(1, s, h, "BE" if s < 8 else "BL") for s, h in units]
        both = lambda slots: [(s, h) for s in slots for h in range(2)]
        X2 = 6
        fi.setdefault(1, []).append(bias)
        if not grpB and self.on("warmlate"): fi.setdefault(2, []).append(self.warm)
        E(4, "hold")
        E(X2, wl("xf27"), wv("E"), self.bar, st("m0"), "go")
        if not grpB:
            self.spread(fi, [self.f_wr(quads[k], lds, f"r{k}", wt) for k, (vo, sb, add, lds, wt) in enumerate(pre)], X2, X2 + 16)
        else:
            dl = []
            for g in range(7):
                if g >= NS: dl.append(uS(g, f"c{g}"))
                dl += [u1(u, f"c{g}") for u in (2 * g, 2 * g + 1) if u >= ND1]
            self.spread(fi, dl, X2, X2 + len(dl))
        def cert(i, tags, *more):
            E(i, (lambda: self.wait_vm(*tags)) if grpB else (lambda: self.wait_lg(*tags)), self.bar, *more)
        cert(19, ["cL", "c0", "c1"], st("m1"))
        cert(28, ["c2", "c3"], st("m2"))
        cert(38, ["c4", "c5", "c6"])
        d2 = [uD(256, u, "D2") for u in (range(4, 14) if grpB else range(4))]
        self.spread(fi, d2, 28, 28 + len(d2))
        if not grpB: self.spread(fi, [lambda: self.cert_load(L)] + fb(both([4])), 40, 48)
        else: self.spread(fi, fb(both([5])), 42, 48)
        E(51, wv("D2"), self.bar, st("m3")); fi.setdefault(52, []).append(self.f_touchB())
        E(57, *([wv("#cert"), lambda: self.cert_check(L)] if not grpB else []), self.bar, st("m4"))
        self.spread(fi, fb(both([0]) if not grpB else both([1, 2, 3])), 57, 75)
        if not grpB:
            E(85, self.bar, st("m5")); self.spread(fi, fb(both([6, 7])), 86, 98)
            E(100, self.bar); E(111, wv("BE"), self.bar)
            outs = [("s79", 64), ("s80", 0), ("s79", 192), ("s79", 320)]
        else:
            E(83, self.bar, st("m5"))
            outs = [("s79", 0), ("s79", 128), ("s79", 256)]
        nb = len(seq)
        for b in range(nb - 1):
            self.spread(fi, self.gelu_items(ACC(b), *outs[b], f"st{b}"), 28 * (b + 1) + 1, 28 * (b + 2) - 1)
            if b + 2 < nb: fi.setdefault(28 * (b + 2) + 20, []).append(self.f_touchA(f"st{b}", outs[b][0], outs[b][1] * 32))
        self.pipeline(n, 4, rd, mm, ev, fi)
        self.stamp("m6")
        G = self.gelu_items(ACC(nb - 1), *outs[-1], "st")
        self.flag_addr()
        if grpB:
            U = fb(both([8, 9, 10, 11, 12]))
            fb2 = lambda slots: [self.f_b(2, s, h, "BL") for s in slots for h in range(2)]
            c = len(G) * 6 // 10
            G1, G2 = G[:c], G[c:]
            for k in range(4): G1.insert(18 * k, U[k])
            for k in range(3): G2.insert(16 * k, U[4 + k])
            V = fb(both([14, 15])) + fb2([16, 17])
            G = G1 + [self.bar] + G2 + U[7:] + V[:2] + [wv("BE"), self.bar, self.flag] + V[2:] + fb2([18, 19]) + fb(both([13]))
        for f in G: f()
        self.stamp("p1end")
        a("s_branch L_P2")

    def type_q(self):
        a = self.a
        RK, XB, HALO = 106496, 73728, 57344
        RU = 32 * 2688
        KP, VP, QP = 164, 176, 188
        MC, MP, MP0, PM = 196, 200, 204, 244
        rot = lambda u: RK + ((u + 6) % 14) * 4096
        uK = lambda col, u, tag: self.f_dma(4, sWA, "s76", col + u * RU, rot(u), tag)
        uV = lambda u, tag: self.f_dma(4, sWA, "s76", 1792 + u * RU, u * 4096, tag)
        for grpB in range(2):
            self.vm = list(self.vm0); self.lg = []
            a(f"L_Q{'AB'[grpB]}:")
            a(f"s_lshl_b32 s70, s{sG}, 7\ns_lshl_b32 s71, s{sWAVE}, 1\ns_add_u32 s70, s70, s71\ns_sub_u32 s70, s70, 16\ns_mul_i32 s70, s70, 896")
            a("v_lshrrev_b32 v12, 5, v1\nv_mul_u32_u24 v12, 896, v12\nv_and_b32 v13, 31, v1\nv_lshl_add_u32 v5, v13, 4, v12\nv_add_u32 v5, s70, v5")
            a("v_mov_b32 v14, 0x80000000\nv_cmp_gt_u32 vcc, 28, v13\nv_cndmask_b32 v5, v14, v5, vcc")
            for jj in range(2):
                self.vmop(f"buffer_load_dwordx4 {vr(88+4*jj,4)}, v5, {srd(sX)}, 0 offen offset:{448*jj}", f"hx{jj}")
            self.mksrd(sWA, 6, 448 * 2688)
            self.dma_voff(2688)
            a(f"s_mul_i32 s76, s{sNT}, 112")
            if grpB: self.first_touch("s76")
            self.common_setup()
            a(f"s_and_b32 s81, s{sWAVE}, 1\ns_add_u32 s81, s81, {2*grpB}\ns_bfe_u32 s80, s{sWAVE}, 0x10001")
            a(f"s_lshl_b32 s70, s81, 5\ns_add_u32 s70, s70, {16*grpB}\ns_mul_i32 s70, s70, 896")
            a("v_and_b32 v12, 15, v1\nv_mul_u32_u24 v13, 896, v12\nv_bfe_u32 v12, v1, 1, 3\nv_lshrrev_b32 v14, 4, v1\nv_xor_b32 v12, v12, v14")
            a("v_lshl_add_u32 v10, v12, 4, v13\nv_xor_b32 v12, 4, v12\nv_lshl_add_u32 v11, v12, 4, v13")
            a(f"v_add_u32 v8, s70, v10\nv_add_u32 v9, s70, v11\nv_add_u32 v10, {HALO}, v10\nv_add_u32 v11, {HALO}, v11")
            a("s_mul_i32 s70, s80, 56")
            a("v_lshrrev_b32 v12, 4, v1\nv_bfe_u32 v13, v1, 2, 2\nv_lshl_add_u32 v14, v12, 3, v13\nv_lshlrev_b32 v14, 7, v14")
            a("v_lshrrev_b32 v13, 1, v13\nv_lshlrev_b32 v13, 6, v13\nv_and_b32 v12, 1, v12\nv_lshl_or_b32 v13, v12, 5, v13")
            a("v_and_b32 v12, 3, v1\nv_lshlrev_b32 v12, 3, v12\nv_add_u32 v12, s70, v12")
            a("v_xor_b32 v15, v12, v13\nv_add_u32 v24, v14, v15\nv_add_u32 v12, 32, v12\nv_xor_b32 v15, v12, v13\nv_add_u32 v25, v14, v15")
            a(f"v_add_u32 v26, {RK}, v24\nv_add_u32 v27, {RK}, v25")
            a(f"v_lshrrev_b32 v12, 5, v1\ns_lshl_b32 s70, s{sWAVE}, 1\nv_add_u32 v12, s70, v12\nv_bfe_u32 v13, v12, 1, 3\nv_mul_u32_u24 v12, 896, v12\nv_add_u32 v12, {HALO}, v12")
            a("v_and_b32 v14, 31, v1\nv_xor_b32 v15, v14, v13\nv_lshl_add_u32 v16, v15, 4, v12\nv_add_u32 v14, 28, v14\nv_xor_b32 v15, v14, v13\nv_lshl_add_u32 v17, v15, 4, v12")
            a(f"s_mul_i32 s70, s80, 10240\ns_add_u32 s70, s70, {XB}\nv_add_u32 v18, s70, v2")
            a("s_lshl_b32 s71, s81, 11\nv_add_u32 v28, s71, v18\nv_add_u32 v29, 2048, v28")
            quads = [164, 168, 172, 176, 180, 184, 188, 192, 196, 200, 204]
            pre = [(896 + u * RU, rot(u), "cL") for u in range(8, 14)] + [(1792 + u * RU, u * 4096, "cV") for u in range(5)]
            self.vwr = 250
            if not grpB: a(f"v_add_u32 v250, s{sW1K}, v2\nv_add_u32 v251, 0x10000, v250")
            self.ln_main(False, True)
            self.stats(88, 2, 104, 105, ["hx0", "hx1"])
            self.reduce_dpp([104, 105], True)
            self.ln_scale(104, 105, False)
            a("s_mov_b32 s70, 0x0fffffff\ns_mov_b32 s71, 0x0fffffff")
            for jj in range(2): self.normalize(88 + 4 * jj, 104, 105, 106, 96)
            a("s_mov_b64 exec, s[70:71]")
            for jj in range(2): a(f"ds_write_b128 v{16+jj}, {vr(88+4*jj,4)}")
            a("s_mov_b64 exec, -1")
            if not grpB:
                for u in range(8): uK(896, u, "E")()
                for k, (add, lds, wt) in enumerate(pre): self.f_ld(quads[k], 4, "s76", add, f"r{k}")()
                if not self.on("warmlate"): self.warm()
            self.wait_vm("E")
            wrs = [self.f_wr(quads[k], lds, f"r{k}", wt) for k, (add, lds, wt) in enumerate(pre)]
            self.lg0(); self.bar()
            self.stamp("x1")
            vmq = list(self.vm)
            a(f"s_bitcmp1_b32 s{sWAVE}, 0\ns_cbranch_scc1 L_Q{2*grpB+1}")
            for qt in (2 * grpB, 2 * grpB + 1):
                self.vm = list(vmq); self.lg = []
                self.q_rounds(qt, uK, uV, KP, VP, self.q_consts(MC, MP, MP0, PM), wrs)
                self.finish_q(qt, KP, VP, QP, MC, MP, MP0, PM)

    def q_consts(self, MC, MP, MP0, PM):
        L = []
        def a(t):
            L.append(lambda t=t: self.a(t))
        a("v_and_b32 v12, 15, v1\nv_lshrrev_b32 v13, 4, v1\nv_lshlrev_b32 v13, 2, v13\nv_sub_u32 v12, v12, v13")
        a(f"v_mov_b32 v14, {hx(NEG)}\nv_mov_b32 v15, 0")
        a(f"s_or_b32 s82, s81, s{sG}\ns_cmp_eq_u32 s82, 0\ns_cselect_b32 s78, {hx(NEG)}, 0")
        for r in range(4):
            a(f"v_subrev_u32 v13, {r}, v12\nv_and_b32 v19, 0x80000001, v13")
            a(f"v_cmp_eq_u32 vcc, 0, v19\nv_mov_b32 v20, {'0xffff0000' if r&1 else '0x0000ffff'}\ns_nop 0\nv_cndmask_b32 v{MC+r}, v14, v15, vcc\nv_cndmask_b32 v{21+(r&1)}, v15, v20, vcc")
            a(f"v_cmp_eq_u32 vcc, 0x80000000, v19")
            if r & 1: a(f"v_or_b32 v{PM+2+(r>>1)}, v21, v22")
            a(f"v_cndmask_b32 v{MP+r}, v14, v15, vcc\nv_cndmask_b32 v{252+(r&1)}, v15, v20, vcc")
            if r & 1: a(f"v_or_b32 v{PM+(r>>1)}, v252, v253")
            a(f"v_min_f32 v{MP0+r}, s78, v{MP+r}")
        qs = 28 ** -0.5 * LOG2E
        a(f"v_cmp_gt_u32 vcc, 48, v1\nv_mov_b32 v19, {hx(qs)}\ns_nop 0\nv_cndmask_b32 v20, v15, v19, vcc\nv_cndmask_b32 v21, 0, -1, vcc")
        a("v_lshrrev_b32 v12, 4, v1\nv_and_b32 v13, 15, v1\nv_lshlrev_b32 v13, 4, v13\nv_lshl_add_u32 v22, v12, 9, v13")
        a(f"s_lshl_b32 s79, s{sG}, 2\ns_add_u32 s79, s79, s81\ns_mul_i32 s79, s79, 144\ns_lshl_b32 s83, s{sNT}, 1\ns_add_u32 s82, s80, s83\ns_lshl_b32 s82, s82, 1")
        a(f"s_add_u32 s79, s79, s82\ns_add_u32 s79, s79, 112\ns_lshl_b32 s79, s79, 10\ns_add_u32 s79, s79, {A_BASE}")
        return L

    def q_rounds(self, qt, uK, uV, KP, VP, consts, wrs):
        a = self.a; grpB = qt >> 1
        WF = lambda i, db: 208 + 8 * (i % 3) + 4 * db
        HF = lambda i: 232 + 4 * (i % 3)
        wv = lambda *t: (lambda: self.wait_vm(*t))
        wl = lambda t: (lambda: self.wait_lg(t))
        st = lambda nm: (lambda: self.stamp(nm))
        def xr(tb, s): self.lgop(f"ds_read_b128 {vr(32+4*(14*tb+s),4)}, v{8+(s&1)} offset:{128*(s>>1)+14336*tb}", f"xf{s}")
        a(f"L_Q{qt}:")
        halo = {0: (qt if qt < 2 else None), 1: (qt - 2 if qt >= 2 else None), 2: None}
        def rd(i):
            rnd, s = divmod(i, 14)
            if i < 2: xr(0, i); xr(1, i)
            b0 = 24 if rnd == 1 else 26
            so = s if rnd == 1 else (s + 6) % 14
            for db in range(2):
                for q in range(2):
                    self.lgop(f"ds_read_b64_tr_b16 {vr(WF(i,db)+2*q,2)}, v{b0+db} offset:{4096*so+512*q}", f"w{i}")
            if halo[rnd] is not None:
                self.lgop(f"ds_read_b128 {vr(HF(i),4)}, v{10+(s&1)} offset:{128*(s>>1)}", f"w{i}")
        def mf(rnd, acc, w, x, first):
            aa, bb = (x, w) if rnd == 1 else (w, x)
            a(f"v_mfma_f32_16x16x32_bf16 {vr(acc,4)}, {vr(aa,4)}, {vr(bb,4)}, {'0' if first else vr(acc,4)}")
        def mm(i):
            rnd, s = divmod(i, 14)
            if s == 0 and rnd > 0: pack(rnd - 1)
            self.wait_lg(f"w{i}", f"xf{i}")
            for tb in range(2):
                for db in range(2):
                    mf(rnd, 144 + 8 * tb + 4 * db, WF(i, db), 32 + 4 * (14 * tb + s), s == 0)
            if halo[rnd] is not None: mf(rnd, 160, WF(i, halo[rnd]), HF(i), s == 0)
        def pack(rnd):
            if rnd == 0:
                for tb in range(2):
                    for k in range(4): a(f"v_cvt_pk_bf16_f32 v{KP+4*(tb+1)+k}, v{144+8*tb+2*k}, v{144+8*tb+2*k+1}")
                self.lgop(f"ds_write_b128 v29, {vr(KP+8,4)}", "xw")
            else:
                for tb in range(2):
                    for db in range(2):
                        for k in range(2):
                            r = 144 + 8 * tb + 4 * db + 2 * k
                            a(f"v_cvt_pk_bf16_f32 v{VP+6*db+2+2*tb+k}, v{r}, v{r+1}")
                for db in range(2): self.lgop(f"ds_write_b64 v29, {vr(VP+6*db+4,2)} offset:{1024+8*db}", "xw")
            if halo[rnd] is not None:
                a("v_cvt_pk_bf16_f32 v248, v160, v161\nv_cvt_pk_bf16_f32 v249, v162, v163")
                self.lgop(f"ds_write_b64 v18, v[248:249] offset:{1024*rnd+8*halo[rnd]}", "xw")
        ev = {}; fi = {}
        E = lambda i, *x: ev.setdefault(i, []).extend(x)
        for i in range(3): fi[i] = [lambda tb=tb, s=s: xr(tb, s) for s in range(2 + 4 * i, 6 + 4 * i) for tb in range(2)]
        mine = lambda lo, hi: range(lo + grpB, hi, 2)
        if not grpB and self.on("warmlate"): fi.setdefault(1, []).append(self.warm)
        E(4, wl("xf13"), self.bar, st("m0"))
        if not grpB:
            fi.setdefault(4, []).extend(wrs[:4]); fi.setdefault(5, []).extend(wrs[4:6]); self.spread(fi, wrs[6:], 6, 11)
        else:
            self.spread(fi, [uV(u, "cV") for u in range(5, 14)], 4, 9)
        E(6, wl("cL"), self.bar, st("m1"))
        E(11, wv("cV"), wl("cV"), self.bar, st("m2"))
        self.spread(fi, ([lambda: self.cert_load(f"Q{qt}")] if qt == 0 else []) + [uK(0, u, "Q0") for u in mine(0, 8)], 11, 14)
        E(14, self.bar, st("m3"))
        self.spread(fi, [uK(0, u, "Q1") for u in mine(8, 14)], 14, 18)
        fi.setdefault(27, []).append(self.f_touchB())
        E(25, wv("Q0", "#cert"), *([lambda: self.cert_check(f"Q{qt}")] if qt == 0 else []), self.bar, st("m4"))
        def xread():
            self.lgop(f"ds_read_b128 {vr(KP,4)}, v28", "xk")
            for db in range(2): self.lgop(f"ds_read_b64 {vr(VP+6*db,2)}, v28 offset:{1024+8*db}", "xk")
        E(29, wv("Q1"), wl("xw"), self.bar, st("m5"), xread)
        self.spread(fi, [self.f_b(1, s, grpB, "BE" if s < 8 else "BL") for s in (0, 1, 2, 3, 4, 5, 6, 7, 8, 12)], 29, 37)
        E(37, self.bar)
        self.spread(fi, [self.f_b(1, s, grpB, "BL") for s in (9, 10, 11)] + [self.f_b(2, s, grpB, "BL") for s in (16, 17, 18, 19)], 37, 42)
        E(41, wv("BE"), self.bar)
        self.spread(fi, consts, 12, 25)
        self.pipeline(42, 2, rd, mm, ev, fi)
        self.stamp("m6")

    def finish_q(self, qt, KP, VP, QP, MC, MP, MP0, PM):
        a = self.a
        for tb in range(2):
            for db in range(2):
                for k in range(4):
                    r = 144 + 8 * tb + 4 * db + k
                    a(f"v_mul_f32 v{r}, v{19+db}, v{r}")
            for k in range(4): a(f"v_cvt_pk_bf16_f32 v{QP+4*tb+k}, v{144+8*tb+2*k}, v{144+8*tb+2*k+1}")
        self.lg0()
        for tb in range(2):
            a(f"v_mfma_f32_16x16x32_bf16 {vr(144+8*tb,4)}, {vr(KP+4*tb,4)}, {vr(QP+4*tb,4)}, {vr(MP0 if tb==0 else MP,4)}")
            a(f"v_mfma_f32_16x16x32_bf16 {vr(148+8*tb,4)}, {vr(KP+4*tb+4,4)}, {vr(QP+4*tb,4)}, {vr(MC,4)}")
        E_ = 208
        both = lambda f: [a(f(tb, 144 + 8 * tb, E_ + 4 * tb)) for tb in range(2)]
        both(lambda tb, s, e: f"v_max3_f32 v{e}, v{s}, v{s+1}, v{s+4}")
        both(lambda tb, s, e: f"v_max3_f32 v{e+1}, v{s+2}, v{s+3}, v{s+6}")
        both(lambda tb, s, e: f"v_max_f32 v{e}, v{e}, v{s+5}")
        both(lambda tb, s, e: f"v_max_f32 v{e+1}, v{e+1}, v{s+7}")
        both(lambda tb, s, e: f"v_max_f32 v{e+2}, v{e}, v{e+1}")
        for sw in ("16", "32"):
            both(lambda tb, s, e: f"v_mov_b32 v{e+3}, v{e+2}")
            both(lambda tb, s, e: f"v_permlane{sw}_swap_b32 v{e+2}, v{e+3}")
            both(lambda tb, s, e: f"v_max_f32 v{e+2}, v{e+2}, v{e+3}")
        both(lambda tb, s, e: f"v_sub_f32 v{e}, v{e}, v{e+2}")
        both(lambda tb, s, e: f"v_sub_f32 v{e+1}, v{e+1}, v{e+2}")
        both(lambda tb, s, e: f"v_exp_f32 v{e}, v{e}")
        both(lambda tb, s, e: f"v_exp_f32 v{e+1}, v{e+1}")
        both(lambda tb, s, e: f"v_add_f32 v{e+2}, v{e}, v{e+1}")
        for sw in ("16", "32"):
            both(lambda tb, s, e: f"v_mov_b32 v{e+3}, v{e+2}")
            both(lambda tb, s, e: f"v_permlane{sw}_swap_b32 v{e+2}, v{e+3}")
            both(lambda tb, s, e: f"v_add_f32 v{e+2}, v{e+2}, v{e+3}")
        both(lambda tb, s, e: f"v_rcp_f32 v{e+2}, v{e+2}")
        both(lambda tb, s, e: f"v_mul_f32 v{e}, v{e}, v{e+2}")
        both(lambda tb, s, e: f"v_mul_f32 v{e+1}, v{e+1}, v{e+2}")
        both(lambda tb, s, e: f"v_cvt_pk_bf16_f32 v{e}, v{e}, v{e}")
        both(lambda tb, s, e: f"v_cvt_pk_bf16_f32 v{e+1}, v{e+1}, v{e+1}")
        P = 216
        for k in range(4): both(lambda tb, s, e: f"v_and_b32 v{P+4*tb+k}, v{PM+k}, v{e+(k&1)}")
        for tb in range(2):
            for db in range(2):
                a(f"v_mfma_f32_16x16x32_bf16 {vr(144+8*tb+4*db,4)}, {vr(VP+6*db+2*tb,4)}, {vr(P+4*tb,4)}, 0")
        for tb in range(2):
            O = 224 + 4 * tb
            for k in range(4): a(f"v_cvt_pk_bf16_f32 v{O+k}, v{144+8*tb+2*k}, v{144+8*tb+2*k+1}")
            a(f"v_and_b32 v{O+2}, v21, v{O+2}\nv_and_b32 v{O+3}, v21, v{O+3}")
            self.vmop(f"buffer_store_dwordx4 {vr(O,4)}, v22, {srd(sWS)}, s79 offen offset:{256*tb} sc1", "st")
        self.flag_addr()
        self.stamp("p1end")
        a("s_branch L_P2")

    def flag_addr(self):
        a = self.a
        a(f"s_lshl_b32 s72, s{sG}, 12\ns_lshl_b32 s73, s{sTYPE}, 8\ns_add_u32 s72, s72, s73\ns_lshl_b32 s73, s{sNT}, 5\ns_add_u32 s72, s72, s73")
        a(f"s_lshl_b32 s73, s{sWAVE}, 2\ns_add_u32 s72, s72, s73\ns_add_u32 s72, s72, {FLAG_BASE}")
    def flag(self):
        a = self.a
        a("v_mov_b32 v16, 1\nv_mov_b32 v17, 0\ns_mov_b64 exec, 1")
        self.wait_vm("st")
        self.vmop(f"buffer_store_dword v16, v17, {srd(sWS)}, s72 offen sc1", "fl")
        a("s_mov_b64 exec, -1")
        self.stamp("flag")

    def phase2(self):
        a = self.a
        sMH, sAB = 76, 77
        a("L_P2:")
        a(f"s_and_b32 s{sMH}, s{sWAVE}, 1\ns_mov_b32 s78, {hx(-LOG2E)}\ns_mov_b32 s79, {hx(-LOG2E)}\ns_mov_b32 s80, 1.0\ns_mov_b32 s81, 1.0")
        a("v_lshrrev_b32 v12, 5, v1\nv_bfe_u32 v13, v1, 2, 2\nv_lshl_add_u32 v14, v12, 2, v13")
        a("v_bfe_u32 v15, v1, 4, 1\nv_lshlrev_b32 v15, 1, v15\nv_bfe_u32 v12, v1, 1, 1\nv_or_b32 v15, v15, v12")
        a("v_lshrrev_b32 v13, 1, v13\nv_lshlrev_b32 v13, 2, v13\nv_xor_b32 v15, v15, v13\nv_lshlrev_b32 v15, 4, v15")
        a("v_and_b32 v12, 1, v1\nv_lshl_or_b32 v15, v12, 3, v15\nv_lshl_add_u32 v5, v14, 7, v15\nv_xor_b32 v8, 64, v5")
        a("v_add_u32 v6, 0x10000, v5\nv_add_u32 v7, 0x20000, v5\nv_add_u32 v9, 0x10000, v8\nv_add_u32 v10, 0x20000, v8")
        a(f"s_lshl_b32 s70, s{sM2}, 1\ns_add_u32 s70, s70, s{sMH}\ns_mul_i32 s{sAB}, s70, {144*1024}\ns_add_u32 s{sAB}, s{sAB}, {A_BASE}")
        a(f"s_lshl_b32 s70, s70, 5\nv_and_b32 v12, 31, v1\nv_add_u32 v12, s70, v12\nv_mul_u32_u24 v3, 896, v12\nv_lshrrev_b32 v12, 5, v1\nv_lshlrev_b32 v12, 4, v12")
        a(f"v_add3_u32 v3, v3, v12, s{sN2B}")
        a(f"s_cmp_ge_u32 s{sWAVE}, 6\ns_cbranch_scc1 L_P2_2\ns_cmp_ge_u32 s{sWAVE}, 4\ns_cbranch_scc1 L_P2_3\ns_cmp_ge_u32 s{sWAVE}, 2\ns_cbranch_scc1 L_P2_1")
        ACC, BR, AF, BF = 96, 128, 32, 16
        RING0 = int(self.opt.get("ring0", 8)); RSTEP = int(self.opt.get("rstep", 1))
        for p in range(4):
            half = p >> 1
            self.vm = []; self.lg = []
            a(f"L_P2_{p}:")
            def baddr(slot, sl, nb, q):
                loc = (sl * 2048 + q * 1024) if p < 3 else (28 * (sl >> 1) + 8 * (sl & 1) + 16 * q) * 128
                off = slot * SLOT + loc
                return 5 + 3 * nb + (off >> 16), off & 0xffff
            def b1regs(cs):
                for c in cs:
                    for sl in range(4):
                        for nb in range(2):
                            for q in range(2):
                                vb, imm = baddr(b1_slot(p, c), sl, nb, q)
                                a(f"ds_read_b64_tr_b16 {vr(BR+8*(4*c+sl)+4*nb+2*q,2)}, v{vb} offset:{imm}")
            if p == 0:
                a(f"s_min_u32 s70, s{sN2B}, 768\ns_load_dwordx16 s[4:19], s[{sB2P}:{sB2P+1}], s70\ns_add_u32 s70, s70, 64")
            b1regs([0, 1])
            a(f"s_cmp_eq_u32 s{sTYPE}, 0\ns_cbranch_scc1 L_P2_{p}h")
            self.vm = ["st"]
            for s in (13, 14, 15): self.f_b(1, s, half, "BL")()
            self.flag()
            a(f"s_branch L_P2_{p}c\nL_P2_{p}h:")
            if half == 0:
                self.vm = ["st"]; self.flag()
            a(f"L_P2_{p}c:")
            self.vm = ["BL"]
            if p == 0:
                a("v_mov_b32 v29, 0xffff0000\ns_mov_b32 s82, 0\ns_mov_b32 s83, -1\ns_waitcnt lgkmcnt(0)")
                self.unpack_bias(4, ACC)
                a(f"s_load_dwordx16 s[4:19], s[{sB2P}:{sB2P+1}], s70")
            self.vmop(f"buffer_load_dwordx4 v[12:15], v3, {srd(sX)}, 0 offen offset:{32*p}", "xr")
            self.lg0(); self.bar()
            a(f"s_cmp_ge_u32 s{sN2B}, 896\ns_cbranch_scc1 L_FIN")
            for s in range(0, 8): self.f_b(2, s, half, "B2")()
            self.wait_vm("BL"); self.bar()
            self.stamp("y")
            b1regs([2, 3])
            if p == 0: self.unpack_bias(4, ACC + 16)
            self.lg0(); self.bar()
            self.stamp("v")
            def last():
                if half == 0:
                    for s in range(8, 16):
                        for h in range(2): self.f_b(2, s, h, "B2")()
            if p == 0:
                a(f"s_cmp_lg_u32 s{sWAVE}, 0\ns_cbranch_scc1 L_np\ns_mov_b32 s71, 0\ns_lshr_b32 s72, s{sM2}, 1\ns_lshl_b32 s72, s72, 12\ns_add_u32 s72, s72, {FLAG_BASE}\nv_lshlrev_b32 v11, 3, v1")
                a(f"L_poll:\nbuffer_load_dwordx2 v[16:17], v11, {srd(sWS)}, s72 offen sc1\ns_waitcnt vmcnt(0)\nv_and_b32 v16, v16, v17\nv_cmp_ne_u32 vcc, 1, v16\ns_nop 1\ns_cbranch_vccz L_got")
                a("s_add_u32 s71, s71, 1\ns_cmp_ge_u32 s71, 0x40000\ns_cbranch_scc1 L_got\ns_sleep 1\ns_branch L_poll\nL_got:")
                self.stamp("got")
                self.bar()
                vsave = list(self.vm)
                last()
                a("s_branch L_u\nL_np:")
                self.vm = vsave
            last()
            if half: self.wait_vm("B2")
            self.bar()
            if p == 0: a("L_u:")
            if half: self.bar()
            self.stamp("poll")
            nL = P_NL[p]; nst = nL + 16
            order = [("r", k) for k in range(16)] + [("l", k) for k in range(nL)]
            gstep = lambda o: P_FIRST[p] + (o[1] if o[0] == "l" else nL + o[1])
            areg = {}; free = [AF + 4 * k for k in range(16)]; nxt = [0]
            def lda():
                n = nxt[0]
                if n >= nst or not free: return
                areg[n] = free.pop(0); nxt[0] += 1
                a(f"s_add_u32 s74, s{sAB}, {gstep(order[n])*1024}")
                self.vmop(f"buffer_load_dwordx4 {vr(areg[n],4)}, v2, {srd(sWS)}, s74 offen sc1", f"a{n}")
            def rdb(n):
                if order[n][0] != "l": return
                k = order[n][1]
                for nb in range(2):
                    for q in range(2):
                        vb, imm = baddr(B2_SLOT[(p, k // 4)], k % 4, nb, q)
                        self.lgop(f"ds_read_b64_tr_b16 {vr(BF+8*(n&1)+4*nb+2*q,2)}, v{vb} offset:{imm}", f"b{n}")
            for n in range(RING0): lda()
            for n in range(nst):
                if n == 0: self.stamp("iss")
                self.wait_vm(f"a{n}"); self.wait_lg(f"b{n}")
                self.stamp(f"n{n}")
                for nb in range(2):
                    w = BF + 8 * (n & 1) + 4 * nb if order[n][0] == "l" else BR + 8 * order[n][1] + 4 * nb
                    c = "0" if (n == 0 and p != 0) else vr(ACC + 16 * nb, 16)
                    a(f"v_mfma_f32_32x32x16_bf16 {vr(ACC+16*nb,16)}, {vr(w,4)}, {vr(areg[n],4)}, {c}")
                if n == 0 and half == 0: self.bar()
                if n + 2 < nst: rdb(n + 2)
                free.append(areg[n])
                if order[n][0] == "r": free.extend([BR + 8 * order[n][1], BR + 8 * order[n][1] + 4])
                for _ in range(RSTEP): lda()
                if n == [39, 35, 29, 28][p]: self.bar()
            self.stamp("mm")
            a(f"s_lshl_b32 s70, s{sMH}, 15\nv_add_u32 v8, s70, v2")
            a("v_permlane32_swap_b32 v12, v14\nv_permlane32_swap_b32 v13, v15")
            X = 64
            for j in range(4): a(f"v_lshlrev_b32 v{X+2*j}, 16, v{12+j}\nv_and_b32 v{X+2*j+1}, 0xffff0000, v{12+j}")
            for d in range(4):
                if d == p: continue
                for j in range(2): a(f"ds_write_b128 v8, {vr(ACC+8*d+4*j,4)} offset:{(d*4+p)*2048+1024*j}")
            self.lg0(); self.bar()
            R = {}; k = 0
            for src in range(4):
                if src == p: R[src] = ACC + 8 * p; continue
                R[src] = 32 + 8 * k; k += 1
                for j in range(2): a(f"ds_read_b128 {vr(R[src]+4*j,4)}, v8 offset:{(p*4+src)*2048+1024*j}")
            self.lg0()
            T, U = 72, 80
            P2 = lambda r, k: vr(r + 2 * k, 2)
            for k in range(4): a(f"v_pk_add_f32 {P2(T,k)}, {P2(R[0],k)}, {P2(R[1],k)}")
            for k in range(4): a(f"v_pk_add_f32 {P2(T,k)}, {P2(T,k)}, {P2(R[2],k)}")
            for k in range(4): a(f"v_pk_mul_f32 {P2(U,k)}, {P2(T,k)}, s[78:79]")
            for k in range(8): a(f"v_exp_f32 v{U+k}, v{U+k}")
            for k in range(4): a(f"v_pk_mul_f32 {P2(T,k)}, {P2(T,k)}, {P2(R[3],k)}")
            for k in range(4): a(f"v_pk_add_f32 {P2(U,k)}, {P2(U,k)}, s[80:81]")
            for k in range(8): a(f"v_rcp_f32 v{U+k}, v{U+k}")
            for k in range(4): a(f"v_pk_fma_f32 {P2(X,k)}, {P2(T,k)}, {P2(U,k)}, {P2(X,k)}")
            for k in range(4): a(f"v_cvt_pk_bf16_f32 v{88+k}, v{X+2*k}, v{X+2*k+1}")
            a("v_permlane32_swap_b32 v88, v90\nv_permlane32_swap_b32 v89, v91")
            a(f"buffer_store_dwordx4 v[88:91], v3, {srd(sOUT)}, 0 offen offset:{32*p}")
            if p < 3: a("s_branch L_FIN")

    def write_stamps(self):
        if not self.stamps: return
        a = self.a
        if self.opt.get("dbg"):
            a("s_waitcnt vmcnt(0)\ns_memrealtime s[100:101]\ns_waitcnt lgkmcnt(0)\ns_not_b32 s84, s84")
            a(f"s_cmp_ge_u32 s{sN2B}, 896\ns_cbranch_scc1 L_END")
            for k in range(9): a(f"v_writelane_b32 v32, s{84+2*k}, {k}")
            a(f"v_lshlrev_b32 v33, 2, v1\ns_mov_b64 exec, 0x1ff\nbuffer_atomic_umax v32, v33, {srd(sDBG)}, 0 offen sc1")
            return
        a("s_waitcnt vmcnt(0)\ns_memrealtime s[100:101]\ns_waitcnt lgkmcnt(0)")
        a(f"s_lshl_b32 s70, s2, 3\ns_add_u32 s70, s70, s{sWAVE}\ns_lshl_b32 s70, s70, 6\nv_mov_b32 v40, s70")
        for k in range(8): a(f"v_mov_b32 v{32+k}, s{84+2*k}")
        a("v_mov_b32 v44, s100\nv_mov_b32 v45, 0\nv_mov_b32 v46, 0\nv_mov_b32 v47, 0\ns_mov_b64 exec, 1")
        a(f"buffer_store_dwordx4 v[32:35], v40, {srd(sWS)}, 0 offen\nbuffer_store_dwordx4 v[36:39], v40, {srd(sWS)}, 0 offen offset:16\nbuffer_store_dwordx4 v[44:47], v40, {srd(sWS)}, 0 offen offset:32")

    def build(self, verbose=False):
        a = self.a
        self.prologue(); self.vm0 = list(self.vm)
        a(f"s_cmp_ge_u32 s{sWAVE}, 4\ns_cbranch_scc1 L_B\ns_cmp_eq_u32 s{sTYPE}, 1\ns_cbranch_scc1 L_QA\ns_branch L_HA\nL_B:\ns_cmp_eq_u32 s{sTYPE}, 1\ns_cbranch_scc1 L_QB\ns_branch L_HB")
        self.type_h(False); self.type_h(True); self.type_q(); self.phase2()
        a("L_FIN:"); self.write_stamps(); a("L_END:\ns_endpgm")
        a.fix_hazards(verbose)
        name = BASE + "_kernel"
        s = "; @launch grid=(256,1,1) block=(512,1,1) lds=163840\n"
        s += '.amdgcn_target "amdgcn-amd-amdhsa--gfx950"\n.text\n'
        s += f".globl {name}\n.p2align 8\n.type {name},@function\n{name}:\n" + a.text()
        s += f""".section .rodata,"a"
.p2align 6
.amdhsa_kernel {name}
  .amdhsa_next_free_vgpr 256
  .amdhsa_next_free_sgpr 102
  .amdhsa_accum_offset 256
  .amdhsa_group_segment_fixed_size 0
  .amdhsa_kernarg_size 88
  .amdhsa_user_sgpr_count 2
  .amdhsa_user_sgpr_kernarg_segment_ptr 1
  .amdhsa_system_sgpr_workgroup_id_x 1
.end_amdhsa_kernel
"""
        return s

if __name__ == "__main__":
    out = sys.argv[1]
    st = sys.argv[2].split(",") if len(sys.argv) > 2 and sys.argv[2] != "-" else None
    opt = {}
    for k in os.environ.get("OPT", "").split(","):
        if "=" in k: kk, vv = k.split("="); opt[kk] = vv
        elif k: opt[k] = True
    open(out, "w").write(Gen(st, opt).build(verbose=len(sys.argv) > 3))
```
